```python
import torch

def _softmax(x, axis=-1):
    return torch.softmax(x, dim=axis)

def _gelu(x):
    return torch.nn.functional.gelu(x, approximate='tanh')

def _silu(x):
    return torch.nn.functional.silu(x)

def _sigmoid(x):
    return torch.sigmoid(x)

def _layernorm(x, axis=-1, eps=1e-05):
    m = x.mean(dim=axis, keepdim=True)
    v = x.var(dim=axis, keepdim=True, unbiased=False)
    return (x - m) / torch.sqrt(v + eps)

def _scatter_add(tgt, idx, src, axis=0):
    return tgt.clone().index_add_(axis, idx, src)

def _segment_sum(src, seg, n):
    out = torch.zeros((n,) + src.shape[1:], dtype=src.dtype)
    return out.index_add_(0, seg, src)

def _pad(x, pw):
    flat = tuple((v for pair in reversed(pw) for v in pair))
    return torch.nn.functional.pad(x, flat)
kernel_name = 'standalone__dilated_atrous__vision'

def setup_inputs():

    _w = lambda a: (lambda t: t.to(torch.bfloat16) if t.is_floating_point() else t)(torch.as_tensor(a))
    H = W = 384
    C = 96
    k = 3
    return {'x': _w((lambda *s: torch.randn(*s, dtype=torch.bfloat16) * 0.05)(1, H, W, C)), 'w': _w((lambda *s: torch.randn(*s, dtype=torch.bfloat16) * 0.05)(k, k, C, C) * (1.0 / (k * C ** 0.5)))}

def reference(x, w):
    B, H, W, C = x.shape
    k = 3
    rate = 2
    pad = (k - 1) * rate // 2
    xp = _pad(x, ((0, 0), (pad, pad), (pad, pad), (0, 0)))
    out = torch.zeros_like(x)
    for i in range(k):
        for j in range(k):
            tap = xp[:, i * rate:i * rate + H, j * rate:j * rate + W, :].clone()
            out = out + torch.einsum('bhwc,co->bhwo', tap, w[i, j])
    return out
```

```python
import sys

NAME = "standalone__dilated_atrous__vision"
ROWB = 10240
RW = 6 * ROWB
DUMP = RW + 92 * 1024
LDS_BYTES = DUMP + 1024
XBYTES = 384 * 384 * 192
WBYTES = 9 * 96 * 96 * 2
PREF = 6
RING = 8

class Em:
    def __init__(self):
        self.lines = []
        self.vm = []
        self.lg = []
    def o(self, s):
        self.lines.append("    " + s)
    def c(self, s):
        self.lines.append("    ; " + s)
    def label(self, s):
        self.lines.append(s + ":")
    def vmem(self, s, tag):
        self.o(s); self.vm.append(tag)
    def lds(self, s, tag):
        self.o(s); self.lg.append(tag)
    def wait_vm(self, pred):
        idx = [i for i, t in enumerate(self.vm) if pred(t)]
        if not idx:
            return
        n = len(self.vm) - 1 - idx[-1]
        assert n <= 63
        self.o(f"s_waitcnt vmcnt({n})")
        self.vm = self.vm[idx[-1] + 1:]
    def wait_lg(self, pred):
        idx = [i for i, t in enumerate(self.lg) if pred(t)]
        if not idx:
            return
        n = len(self.lg) - 1 - idx[-1]
        assert n <= 15, n
        self.o(f"s_waitcnt lgkmcnt({n})")
        self.lg = self.lg[idx[-1] + 1:]

S_SRDX, S_SRDW, S_SRDO = 4, 8, 12
S_W, S_NH, S_PG = 20, 21, 22
S_X0, S_Y0 = 23, 24
S_ROWOFF = 25
S_M0A, S_M0B, S_M0C, S_STRC = 26, 27, 28, 29
S_T0, S_T1, S_T2 = 30, 31, 32
S_OUT, S_OUT2 = 33, 34
S_BY = 35
S_WSOFF, S_WM0 = 36, 37
V_LANE = 1
V_XOFF = (2, 3, 4)
V_WOFF = 5
V_B = (6, 7, 8)
V_WT = (9, 10)
V_OUT = 11
V_T = list(range(190, 206))
VB0 = 16
VACC = 48
VW = 120

def wfrag(tap, ks, mt):
    f = (tap * 3 + ks) * 3 + mt
    if f < 64:
        return f"a[{4*f}:{4*f+3}]", ("a", 4 * f)
    b = VW + 4 * (f - 64)
    return f"v[{b}:{b+3}]", ("v", b)

def acc(buf, t, mt):
    return VACC + buf * 36 + (t * 3 + mt) * 4

def gen():
    e = Em()
    o = e.o
    o("s_cmp_ge_u32 s2, 256")
    o("s_cbranch_scc1 L_end")
    o("s_load_dwordx4 s[4:7], s[0:1], 0")
    o("s_load_dwordx2 s[12:13], s[0:1], 16")
    o("v_lshrrev_b32 v12, 6, v0")
    o(f"v_and_b32 v{V_LANE}, 63, v0")
    o("s_nop 0")
    o(f"v_readfirstlane_b32 s{S_W}, v12")
    o(f"s_and_b32 s{S_T0}, s2, 7")
    o(f"s_mul_i32 s{S_X0}, s{S_T0}, 48")
    o(f"s_lshr_b32 s{S_T0}, s2, 3")
    o(f"s_and_b32 s{S_T1}, s{S_T0}, 1")
    o(f"s_lshr_b32 s{S_BY}, s{S_T0}, 1")
    o(f"s_mul_i32 s{S_Y0}, s{S_BY}, 24")
    o(f"s_add_u32 s{S_Y0}, s{S_Y0}, s{S_T1}")
    o("s_nop 1")
    o(f"s_and_b32 s{S_NH}, s{S_W}, 1")
    o(f"s_lshr_b32 s{S_PG}, s{S_W}, 1")
    t = V_T
    o(f"s_lshl_b32 s{S_T0}, s{S_W}, 6")
    o(f"s_sub_u32 s{S_T1}, s{S_X0}, 2")
    for j in range(3):
        o(f"v_add_u32 v{t[0]}, s{S_T0}, v{V_LANE}")
        if j:
            o(f"v_add_u32 v{t[0]}, {256*j}, v{t[0]}")
        o(f"v_mul_u32_u24 v{t[1]}, 1366, v{t[0]}")
        o(f"v_lshrrev_b32 v{t[1]}, 16, v{t[1]}")
        o(f"v_mul_u32_u24 v{t[2]}, 48, v{t[1]}")
        o(f"v_sub_u32 v{t[2]}, v{t[0]}, v{t[2]}")
        o(f"v_lshrrev_b32 v{t[3]}, 3, v{t[2]}")
        o(f"v_and_b32 v{t[4]}, 1, v{t[1]}")
        o(f"v_xor_b32 v{t[3]}, v{t[3]}, v{t[4]}")
        o(f"v_bfe_u32 v{t[4]}, v{t[2]}, 1, 2")
        o(f"v_lshl_add_u32 v{t[4]}, v{t[1]}, 2, v{t[4]}")
        o(f"v_and_b32 v{t[5]}, 1, v{t[2]}")
        o(f"v_lshlrev_b32 v{t[5]}, 4, v{t[5]}")
        o(f"v_lshl_add_u32 v{t[5]}, v{t[3]}, 5, v{t[5]}")
        o(f"v_add_u32 v{t[6]}, s{S_T1}, v{t[4]}")
        o(f"v_cmp_gt_u32 vcc, 52, v{t[4]}")
        o(f"v_mov_b32 v{t[7]}, 0x7fff")
        o("s_nop 0")
        o(f"v_cndmask_b32 v{t[6]}, v{t[7]}, v{t[6]}, vcc")
        o(f"v_mov_b32 v{t[7]}, 192")
        o(f"v_mad_u32_u24 v{t[5]}, v{t[6]}, v{t[7]}, v{t[5]}")
        o(f"v_mov_b32 v{t[8]}, 0x180")
        o(f"v_cmp_gt_u32 vcc, v{t[8]}, v{t[6]}")
        o(f"v_mov_b32 v{t[7]}, 0x80000000")
        o("s_nop 0")
        o(f"v_cndmask_b32 v{V_XOFF[j]}, v{t[7]}, v{t[5]}, vcc")
    o(f"s_lshl_b32 s{S_T0}, s{S_W}, 10")
    o(f"v_lshlrev_b32 v{V_WOFF}, 4, v{V_LANE}")
    o(f"v_add_u32 v{V_WOFF}, s{S_T0}, v{V_WOFF}")
    o(f"s_lshl_b32 s{S_M0A}, s{S_W}, 10")
    o(f"s_add_u32 s{S_M0B}, s{S_M0A}, 4096")
    o(f"s_add_u32 s{S_M0C}, s{S_M0A}, 8192")
    o(f"s_mov_b32 s{S_STRC}, {ROWB}")
    o(f"s_cmp_lt_u32 s{S_W}, 2")
    o(f"s_cselect_b32 s{S_M0C}, s{S_M0C}, {DUMP}")
    o(f"s_cselect_b32 s{S_STRC}, s{S_STRC}, 0")
    o(f"s_mul_i32 s{S_ROWOFF}, s{S_Y0}, 73728")
    o(f"s_sub_u32 s{S_ROWOFF}, s{S_ROWOFF}, {2*73728}")
    o(f"s_lshl_b32 s{S_WM0}, s{S_W}, 10")
    o(f"s_add_u32 s{S_WM0}, s{S_WM0}, {RW}")
    o(f"s_mov_b32 s{S_WSOFF}, 0")
    o("s_waitcnt lgkmcnt(0)")
    o("s_mov_b32 s8, s6")
    o("s_and_b32 s9, s7, 0xffff")
    o(f"s_mov_b32 s10, {WBYTES}")
    o("s_mov_b32 s11, 0x00020000")
    o("s_and_b32 s5, s5, 0xffff")
    o(f"s_mov_b32 s6, {XBYTES}")
    o("s_mov_b32 s7, 0x00020000")
    o("s_and_b32 s13, s13, 0xffff")
    o(f"s_mov_b32 s14, {XBYTES}")
    o("s_mov_b32 s15, 0x00020000")

    def dma_w(n, tag, first_soff):
        o(f"s_mov_b32 s{S_WSOFF}, {first_soff}")
        o(f"s_mov_b32 s{S_T2}, s{S_WM0}")
        for k in range(n):
            o(f"s_mov_b32 m0, s{S_T2}")
            o(f"s_add_u32 s{S_T2}, s{S_T2}, 4096")
            e.vmem(f"buffer_load_dwordx4 v{V_WOFF}, s[8:11], s{S_WSOFF} offen lds", tag)
            o(f"s_add_u32 s{S_WSOFF}, s{S_WSOFF}, 4096")

    def dma_row(ir):
        if ir == 0:
            o(f"s_cmp_eq_u32 s{S_BY}, 0")
            o(f"s_cselect_b32 s{S_T0}, 0x40000000, s{S_ROWOFF}")
        elif ir == 13:
            o(f"s_cmp_eq_u32 s{S_BY}, 15")
            o(f"s_cselect_b32 s{S_T0}, 0x40000000, s{S_ROWOFF}")
        else:
            o(f"s_mov_b32 s{S_T0}, s{S_ROWOFF}")
        for j, sm in enumerate((S_M0A, S_M0B, S_M0C)):
            o(f"s_mov_b32 m0, s{sm}")
            if j < 2:
                o(f"s_add_u32 s{sm}, s{sm}, {ROWB}")
            else:
                o(f"s_add_u32 s{sm}, s{sm}, s{S_STRC}")
            e.vmem(f"buffer_load_dwordx4 v{V_XOFF[j]}, s[4:7], s{S_T0} offen lds", ("x", ir))
        o(f"s_add_u32 s{S_ROWOFF}, s{S_ROWOFF}, {2*73728}")

    dma_w(23, "w1", 0)
    for ir in range(6):
        dma_row(ir)

    o(f"v_and_b32 v{t[0]}, 15, v{V_LANE}")
    o(f"v_lshrrev_b32 v{t[1]}, 4, v{V_LANE}")
    o(f"v_lshrrev_b32 v{t[2]}, 1, v{t[1]}")
    o(f"v_and_b32 v{t[3]}, 1, v{t[1]}")
    o(f"s_mul_i32 s{S_T0}, s{S_PG}, {ROWB}")
    for dj in range(3):
        o(f"v_add_u32 v{t[4]}, {2*dj}, v{t[0]}")
        o(f"v_lshrrev_b32 v{t[5]}, 2, v{t[4]}")
        o(f"v_and_b32 v{t[6]}, 1, v{t[5]}")
        o(f"v_xor_b32 v{t[6]}, v{t[6]}, v{t[2]}")
        o(f"v_mul_u32_u24 v{t[5]}, 768, v{t[5]}")
        o(f"v_lshl_add_u32 v{t[5]}, v{t[6]}, 7, v{t[5]}")
        o(f"v_and_b32 v{t[4]}, 3, v{t[4]}")
        o(f"v_lshl_add_u32 v{t[5]}, v{t[4]}, 5, v{t[5]}")
        o(f"v_lshl_add_u32 v{t[5]}, v{t[3]}, 4, v{t[5]}")
        o(f"v_add_u32 v{V_B[dj]}, s{S_T0}, v{t[5]}")
    o(f"v_bfe_u32 v{t[4]}, v{V_LANE}, 2, 2")
    o(f"v_lshl_add_u32 v{t[4]}, v{t[1]}, 3, v{t[4]}")
    o(f"v_mul_u32_u24 v{t[4]}, 192, v{t[4]}")
    o(f"v_and_b32 v{t[5]}, 3, v{V_LANE}")
    o(f"v_lshl_add_u32 v{t[4]}, v{t[5]}, 3, v{t[4]}")
    o(f"s_mul_i32 s{S_T0}, s{S_NH}, 96")
    o(f"s_add_u32 s{S_T1}, s{S_T0}, {RW}")
    o(f"v_add_u32 v{V_WT[0]}, s{S_T1}, v{t[4]}")
    o(f"v_add_u32 v{V_WT[1]}, {3*18432}, v{V_WT[0]}")
    o(f"v_add_u32 v{t[4]}, s{S_X0}, v{t[0]}")
    o(f"v_mul_u32_u24 v{t[4]}, 192, v{t[4]}")
    o(f"v_lshl_add_u32 v{t[4]}, v{t[1]}, 3, v{t[4]}")
    o(f"v_add_u32 v{V_OUT}, s{S_T0}, v{t[4]}")
    o(f"s_lshl_b32 s{S_T0}, s{S_PG}, 1")
    o(f"s_add_u32 s{S_T0}, s{S_T0}, s{S_Y0}")
    o(f"s_mul_i32 s{S_OUT}, s{S_T0}, 73728")
    o(f"s_add_u32 s{S_OUT2}, s{S_OUT}, 6144")

    def wtr(taps, tap0):
        for tap in taps:
            tl = tap - tap0
            base, off0 = (V_WT[0], tl * 18432) if tl < 3 else (V_WT[1], (tl - 3) * 18432)
            for ks in range(3):
                for mt in range(3):
                    _, (kind, r) = wfrag(tap, ks, mt)
                    for h in range(2):
                        off = off0 + ks * 6144 + h * 768 + mt * 32
                        e.lds(f"ds_read_b64_tr_b16 {kind}[{r+2*h}:{r+2*h+1}], v{base} offset:{off}", "wtr")

    e.wait_vm(lambda tg: tg == "w1")
    o("s_barrier")
    wtr(range(0, 5), 0)
    o("s_waitcnt lgkmcnt(0)"); e.lg = []
    o("s_barrier")
    dma_w(18, "w2", 5 * 18432)
    e.wait_vm(lambda tg: tg in (("x", 0), ("x", 1), ("x", 2), ("x", 3)))
    o("s_barrier")

    units = []
    for s in range(6):
        for tap in range(9):
            for ks in range(3):
                for tt in range(3):
                    units.append((s, tap, ks, tt))
    NU = len(units)
    issued = 0

    def issue_read(k):
        s, tap, ks, tt = units[k]
        di, dj = divmod(tap, 3)
        if k % 81 == 0 and s > 0:
            for d in range(3):
                o(f"v_add_u32 v{V_B[d]}, {2*ROWB}, v{V_B[d]}")
        r = VB0 + 4 * (k % RING)
        off = di * ROWB + tt * 3072 + ks * 256
        e.lds(f"ds_read_b128 v[{r}:{r+3}], v{V_B[dj]} offset:{off}", ("b", k))

    epi = []

    def make_epilogue(s):
        buf = s & 1
        items = []
        for tt in range(3):
            for mt in range(3):
                a = acc(buf, tt, mt)
                items.append(lambda a=a: o(f"v_cvt_pk_bf16_f32 v{a}, v{a}, v{a+1}"))
                items.append(lambda a=a: o(f"v_cvt_pk_bf16_f32 v{a+1}, v{a+2}, v{a+3}"))
                so = S_OUT if tt < 2 else S_OUT2
                off = (tt * 3072 if tt < 2 else 0) + mt * 32
                items.append(lambda a=a, so=so, off=off: e.vmem(
                    f"buffer_store_dwordx2 v[{a}:{a+1}], v{V_OUT}, s[12:15], s{so} offen offset:{off}", "st"))
        items.append(lambda: o(f"s_add_u32 s{S_OUT}, s{S_OUT}, {4*73728}"))
        items.append(lambda: o(f"s_add_u32 s{S_OUT2}, s{S_OUT2}, {4*73728}"))
        return items

    limit = 45
    for k in range(NU):
        s, tap, ks, tt = units[k]
        while issued < min(NU, k + PREF + 1):
            ki = issued
            si = units[ki][0]
            if ki % 81 == 0 and si >= 2:
                need = (("x", 2 * si + 2), ("x", 2 * si + 3))
                e.wait_vm(lambda tg: tg in need)
                o("s_barrier")
            issue_read(ki)
            issued += 1
        if k == 45:
            e.wait_vm(lambda tg: tg == "w2")
            o("s_barrier")
            wtr(range(5, 9), 5)
            o("s_waitcnt lgkmcnt(0)"); e.lg = []
            o("s_barrier")
            for ir in range(6, 14):
                dma_row(ir)
        e.wait_lg(lambda tg: tg == ("b", k))
        r = VB0 + 4 * (k % RING)
        buf = s & 1
        for mt in range(3):
            a = acc(buf, tt, mt)
            wf, _ = wfrag(tap, ks, mt)
            cin = "0" if (tap == 0 and ks == 0) else f"v[{a}:{a+3}]"
            o(f"v_mfma_f32_16x16x32_bf16 v[{a}:{a+3}], {wf}, v[{r}:{r+3}], {cin}")
            if epi and (k % 81) >= 3:
                epi.pop(0)()
        if k % 81 == 80:
            assert not epi
            epi = make_epilogue(s)
    o("s_nop 15")
    for it in epi:
        it()
    e.label("L_end")
    o("s_endpgm")
    return e.lines

HEADER = f"""; Kernarg layout for this problem (40 bytes, ptrs only, base s[0:1]):
; @launch grid=(256,1,1) block=(256,1,1) lds={LDS_BYTES}
.amdgcn_target "amdgcn-amd-amdhsa--gfx950"
.text
.globl {NAME}_kernel
.p2align 8
.type {NAME}_kernel,@function
{NAME}_kernel:
"""
FOOTER = f"""
.section .rodata,"a"
.p2align 6
.amdhsa_kernel {NAME}_kernel
  .amdhsa_next_free_vgpr 512
  .amdhsa_next_free_sgpr 64
  .amdhsa_accum_offset 256
  .amdhsa_group_segment_fixed_size 0
  .amdhsa_kernarg_size 40
  .amdhsa_user_sgpr_count 2
  .amdhsa_user_sgpr_kernarg_segment_ptr 1
  .amdhsa_system_sgpr_workgroup_id_x 1
.end_amdhsa_kernel
"""

if __name__ == "__main__":
    out = sys.argv[1] if len(sys.argv) > 1 else f"cdna_kernels/{NAME}.s"
    for u in range(768):
        assert (u * 1366) >> 16 == u // 48
    with open(out, "w") as f:
        f.write(HEADER + "\n".join(gen()) + FOOTER)
    print("wrote", out)
```

```python
import sys, os

NAME = "standalone__dilated_atrous__vision"
ROWB = 10240
RW = 6 * ROWB
ST = 14 * ROWB
DUMP = 163840 - 1024
LDS_BYTES = 163840
XBYTES = 384 * 384 * 192
WBYTES = 9 * 96 * 96 * 2
E = lambda k, d: int(os.environ.get(k, str(d)))
PREF = E("PREF", 6); RING = 8
LOOK = E("LOOK", 3)
DIAG = E("DIAG", 0)
XS = eval(os.environ.get("XS", "{0: 2, 2: 1, 4: 1, 8: 2}"))
INIT = os.environ.get("INIT", "w0,x,x,w1")
INIT2 = os.environ.get("INIT2", "w2")
WLOOK = E("WLOOK", 3)
NOST = E("NOST", 0); NOBAR = E("NOBAR", 0); NODMA = E("NODMA", 0); NOEPI = E("NOEPI", 0); NOVW = E("NOVW", 0)
STPOL = os.environ.get("STPOL", "sc1 nt")
XPOL = os.environ.get("XPOL", "nt")

class Em:
    def __init__(self):
        self.lines = []; self.vm = []; self.lg = []
    def o(self, s): self.lines.append("    " + s)
    def label(self, s): self.lines.append(s + ":")
    def vmem(self, s, tag): self.o(s); self.vm.append(tag)
    def lds(self, s, tag): self.o(s); self.lg.append(tag)
    def wait_vm(self, pred):
        idx = [i for i, t in enumerate(self.vm) if pred(t)]
        if not idx: return
        n = len(self.vm) - 1 - idx[-1]
        assert n <= 63
        self.o(f"s_waitcnt vmcnt({n})")
        self.vm = self.vm[idx[-1] + 1:]
    def wait_lg(self, pred):
        idx = [i for i, t in enumerate(self.lg) if pred(t)]
        if not idx: return
        n = min(15, len(self.lg) - 1 - idx[-1])
        self.o(f"s_waitcnt lgkmcnt({n})")
        self.lg = self.lg[len(self.lg) - n:] if n else []

S_W, S_NH, S_PG = 20, 21, 22
S_X0, S_Y0 = 23, 24
S_ROWOFF = 25
S_M0A, S_M0B, S_M0C, S_STRC = 26, 27, 28, 29
S_T0, S_T1, S_T2 = 30, 31, 32
S_OUT = 33
S_BY = 35
S_WM0, S_WM4 = 36, 37
S_WM4S = 38
V_LANE = 1
V_XOFF = (2, 3, 4)
V_WOFF, V_WOFF4 = 5, 12
V_B = (6, 7, 8)
V_WT = (9, 10)
V_STW = (13, 14, 15)
V_STR = (206, 207, 208)
V_OA, V_OB = 209, 210
V_T = list(range(190, 206))
VB0 = 16
VACC = 48
VW = 120
VO = 212

def wfrag(tap, ks, mt):
    f = (tap * 3 + ks) * 3 + mt
    if f < 64: return f"a[{4*f}:{4*f+3}]", ("a", 4 * f)
    b = VW + 4 * (f - 64)
    return f"v[{b}:{b+3}]", ("v", b)

def acc(buf, t, mt): return VACC + buf * 36 + (t * 3 + mt) * 4

def gen():
    e = Em(); o = e.o
    nst = [0]
    def stamp(force=False, d4=False):
        if not DIAG: return
        if DIAG == 2 and not force: return
        if DIAG == 4 and not (force or d4): return
        if nst[0] >= 15: return
        i = nst[0]; nst[0] += 1
        assert i < 16
        o("s_waitcnt lgkmcnt(0)"); e.lg = []
        o(f"s_mem{'real' if DIAG == 3 else ''}time s[{64+2*i}:{65+2*i}]")
        o("s_waitcnt lgkmcnt(0)")
    t = V_T
    o("s_cmp_ge_u32 s2, 256")
    o("s_cbranch_scc1 L_end")
    o("s_load_dwordx4 s[4:7], s[0:1], 0")
    o("s_load_dwordx2 s[12:13], s[0:1], 16")
    if DIAG:
        o("s_load_dwordx2 s[56:57], s[0:1], 32")
    stamp(True)
    if DIAG == 2:
        o("s_memrealtime s[96:97]"); o("s_waitcnt lgkmcnt(0)")
    o("v_lshrrev_b32 v190, 6, v0")
    o(f"v_and_b32 v{V_LANE}, 63, v0")
    o("s_nop 0")
    o(f"v_readfirstlane_b32 s{S_W}, v190")
    o(f"s_and_b32 s{S_T0}, s2, 7")
    o(f"s_mul_i32 s{S_X0}, s{S_T0}, 48")
    o(f"s_lshr_b32 s{S_T0}, s2, 3")
    o(f"s_and_b32 s{S_T1}, s{S_T0}, 1")
    o(f"s_lshr_b32 s{S_BY}, s{S_T0}, 1")
    o(f"s_mul_i32 s{S_Y0}, s{S_BY}, 24")
    o(f"s_add_u32 s{S_Y0}, s{S_Y0}, s{S_T1}")
    o("s_nop 1")
    o(f"s_and_b32 s{S_NH}, s{S_W}, 1")
    o(f"s_lshr_b32 s{S_PG}, s{S_W}, 1")
    o(f"s_lshl_b32 s{S_T0}, s{S_W}, 10")
    o(f"v_lshlrev_b32 v{V_WOFF}, 4, v{V_LANE}")
    o(f"v_add_u32 v{V_WOFF}, s{S_T0}, v{V_WOFF}")
    o(f"s_add_u32 s{S_WM0}, s{S_T0}, {RW}")
    o(f"s_cmp_lt_u32 s{S_W}, 2")
    o(f"s_cselect_b32 s{S_T1}, 0, 0x80000000")
    o(f"v_or_b32 v{V_WOFF4}, s{S_T1}, v{V_WOFF}")
    o(f"s_cselect_b32 s{S_WM4S}, 1, 0")
    o(f"s_lshl_b32 s{S_T0}, s{S_W}, 6")
    o(f"s_sub_u32 s{S_T1}, s{S_X0}, 2")
    for j in range(3):
        o(f"v_add_u32 v{t[0]}, s{S_T0}, v{V_LANE}")
        if j: o(f"v_add_u32 v{t[0]}, {256*j}, v{t[0]}")
        o(f"v_mul_u32_u24 v{t[1]}, 1366, v{t[0]}")
        o(f"v_lshrrev_b32 v{t[1]}, 16, v{t[1]}")
        o(f"v_mul_u32_u24 v{t[2]}, 48, v{t[1]}")
        o(f"v_sub_u32 v{t[2]}, v{t[0]}, v{t[2]}")
        o(f"v_lshrrev_b32 v{t[3]}, 3, v{t[2]}")
        o(f"v_and_b32 v{t[4]}, 1, v{t[1]}")
        o(f"v_xor_b32 v{t[3]}, v{t[3]}, v{t[4]}")
        o(f"v_bfe_u32 v{t[4]}, v{t[2]}, 1, 2")
        o(f"v_lshl_add_u32 v{t[4]}, v{t[1]}, 2, v{t[4]}")
        o(f"v_and_b32 v{t[5]}, 1, v{t[2]}")
        o(f"v_lshlrev_b32 v{t[5]}, 4, v{t[5]}")
        o(f"v_lshl_add_u32 v{t[5]}, v{t[3]}, 5, v{t[5]}")
        o(f"v_add_u32 v{t[6]}, s{S_T1}, v{t[4]}")
        o(f"v_cmp_gt_u32 vcc, 52, v{t[4]}")
        o(f"v_mov_b32 v{t[7]}, 0x7fff")
        o("s_nop 0")
        o(f"v_cndmask_b32 v{t[6]}, v{t[7]}, v{t[6]}, vcc")
        o(f"v_mov_b32 v{t[7]}, 192")
        o(f"v_mad_u32_u24 v{t[5]}, v{t[6]}, v{t[7]}, v{t[5]}")
        o(f"v_mov_b32 v{t[8]}, 0x180")
        o(f"v_cmp_gt_u32 vcc, v{t[8]}, v{t[6]}")
        o(f"v_mov_b32 v{t[7]}, 0x80000000")
        o("s_nop 0")
        o(f"v_cndmask_b32 v{V_XOFF[j]}, v{t[7]}, v{t[5]}, vcc")
    o(f"s_lshl_b32 s{S_M0A}, s{S_W}, 10")
    o(f"s_add_u32 s{S_M0B}, s{S_M0A}, 4096")
    o(f"s_add_u32 s{S_M0C}, s{S_M0A}, 8192")
    o(f"s_mov_b32 s{S_STRC}, {ROWB}")
    o(f"s_cmp_lt_u32 s{S_W}, 2")
    o(f"s_cselect_b32 s{S_M0C}, s{S_M0C}, {DUMP}")
    o(f"s_cselect_b32 s{S_STRC}, s{S_STRC}, 0")
    o(f"s_mul_i32 s{S_ROWOFF}, s{S_Y0}, 73728")
    o(f"s_sub_u32 s{S_ROWOFF}, s{S_ROWOFF}, {2*73728}")
    o("s_waitcnt lgkmcnt(0)")
    o("s_mov_b32 s8, s6")
    o("s_and_b32 s9, s7, 0xffff")
    o(f"s_mov_b32 s10, {WBYTES}")
    o("s_mov_b32 s11, 0x00020000")
    o("s_and_b32 s5, s5, 0xffff")
    o(f"s_mov_b32 s6, {XBYTES}")
    o("s_mov_b32 s7, 0x00020000")
    o("s_and_b32 s13, s13, 0xffff")
    o(f"s_mov_b32 s14, {XBYTES}")
    o("s_mov_b32 s15, 0x00020000")

    def w_dma_thunks(tap):
        slot = tap % 5
        th = []
        for k in range(5):
            def f(k=k):
                if k < 4:
                    o(f"s_add_u32 m0, s{S_WM0}, {slot*18432 + 4096*k}")
                    o(f"s_mov_b32 s{S_T2}, {tap*18432 + 4096*k}")
                    e.vmem(f"buffer_load_dwordx4 v{V_WOFF}, s[8:11], s{S_T2} offen lds", ("w", tap))
                else:
                    o(f"s_add_u32 s{S_T1}, s{S_WM0}, {slot*18432 + 4096*4}")
                    o(f"s_cmp_eq_u32 s{S_WM4S}, 1")
                    o(f"s_cselect_b32 m0, s{S_T1}, {DUMP}")
                    o(f"s_mov_b32 s{S_T2}, {tap*18432 + 4096*4}")
                    e.vmem(f"buffer_load_dwordx4 v{V_WOFF4}, s[8:11], s{S_T2} offen lds", ("w", tap))
            th.append(f)
        return th

    rows_issued = [0]
    def row_thunks():
        ir = rows_issued[0]
        assert ir < 14
        rows_issued[0] += 1
        th = []
        for j, sm in enumerate((S_M0A, S_M0B, S_M0C)):
            def f(j=j, sm=sm):
                if j == 0:
                    if ir == 0:
                        o(f"s_cmp_eq_u32 s{S_BY}, 0")
                        o(f"s_cselect_b32 s{S_T0}, 0x40000000, s{S_ROWOFF}")
                    elif ir == 13:
                        o(f"s_cmp_eq_u32 s{S_BY}, 15")
                        o(f"s_cselect_b32 s{S_T0}, 0x40000000, s{S_ROWOFF}")
                    else:
                        o(f"s_mov_b32 s{S_T0}, s{S_ROWOFF}")
                    o(f"s_add_u32 s{S_ROWOFF}, s{S_ROWOFF}, {2*73728}")
                o(f"s_mov_b32 m0, s{sm}")
                if j < 2: o(f"s_add_u32 s{sm}, s{sm}, {ROWB}")
                else: o(f"s_add_u32 s{sm}, s{sm}, s{S_STRC}")
                if not (NODMA and ir >= 6): e.vmem(f"buffer_load_dwordx4 v{V_XOFF[j]}, s[4:7], s{S_T0} offen {XPOL} lds", ("x", ir))
            th.append(f)
        return th
    def run(ths):
        for f in ths: f()

    def tr_thunks(tap):
        slot = tap % 5
        base, off0 = (V_WT[0], slot * 18432) if slot < 3 else (V_WT[1], (slot - 3) * 18432)
        th = []
        for ks in range(3):
            for mt in range(3):
                _, (kind, r) = wfrag(tap, ks, mt)
                for h in range(2):
                    off = off0 + ks * 6144 + h * 768 + mt * 32
                    th.append(lambda kind=kind, r=r, h=h, off=off, base=base: e.lds(
                        f"ds_read_b64_tr_b16 {kind}[{r+2*h}:{r+2*h+1}], v{base} offset:{off}", ("tr", tap)))
        return th

    w_issued = set()
    def do_init(seq):
        for it in seq.split(","):
            if not it: continue
            if it == "x": run(row_thunks())
            else:
                run(w_dma_thunks(int(it[1:]))); w_issued.add(int(it[1:]))
    do_init(INIT)

    o(f"v_and_b32 v{t[0]}, 15, v{V_LANE}")
    o(f"v_lshrrev_b32 v{t[1]}, 4, v{V_LANE}")
    o(f"v_lshrrev_b32 v{t[2]}, 1, v{t[1]}")
    o(f"v_and_b32 v{t[3]}, 1, v{t[1]}")
    o(f"s_mul_i32 s{S_T0}, s{S_PG}, {ROWB}")
    for dj in range(3):
        o(f"v_add_u32 v{t[4]}, {2*dj}, v{t[0]}")
        o(f"v_lshrrev_b32 v{t[5]}, 2, v{t[4]}")
        o(f"v_and_b32 v{t[6]}, 1, v{t[5]}")
        o(f"v_xor_b32 v{t[6]}, v{t[6]}, v{t[2]}")
        o(f"v_mul_u32_u24 v{t[5]}, 768, v{t[5]}")
        o(f"v_lshl_add_u32 v{t[5]}, v{t[6]}, 7, v{t[5]}")
        o(f"v_and_b32 v{t[4]}, 3, v{t[4]}")
        o(f"v_lshl_add_u32 v{t[5]}, v{t[4]}, 5, v{t[5]}")
        o(f"v_lshl_add_u32 v{t[5]}, v{t[3]}, 4, v{t[5]}")
        o(f"v_add_u32 v{V_B[dj]}, s{S_T0}, v{t[5]}")
    o(f"v_bfe_u32 v{t[4]}, v{V_LANE}, 2, 2")
    o(f"v_lshl_add_u32 v{t[4]}, v{t[1]}, 3, v{t[4]}")
    o(f"v_mul_u32_u24 v{t[4]}, 192, v{t[4]}")
    o(f"v_and_b32 v{t[5]}, 3, v{V_LANE}")
    o(f"v_lshl_add_u32 v{t[4]}, v{t[5]}, 3, v{t[4]}")
    o(f"s_mul_i32 s{S_T0}, s{S_NH}, 96")
    o(f"s_add_u32 s{S_T1}, s{S_T0}, {RW}")
    o(f"v_add_u32 v{V_WT[0]}, s{S_T1}, v{t[4]}")
    o(f"v_add_u32 v{V_WT[1]}, {3*18432}, v{V_WT[0]}")
    o(f"s_mul_i32 s{S_T0}, s{S_PG}, 9216")
    o(f"s_add_u32 s{S_T0}, s{S_T0}, {ST}")
    o(f"s_mul_i32 s{S_T1}, s{S_NH}, 6")
    o(f"v_bfe_u32 v{t[4]}, v{t[0]}, 1, 2")
    o(f"v_mul_u32_u24 v{t[5]}, 192, v{t[0]}")
    o(f"v_lshl_add_u32 v{t[5]}, v{t[3]}, 3, v{t[5]}")
    o(f"v_add_u32 v{t[5]}, s{S_T0}, v{t[5]}")
    for mt in range(3):
        o(f"v_add_u32 v{t[6]}, s{S_T1}, v{t[2]}")
        if mt: o(f"v_add_u32 v{t[6]}, {2*mt}, v{t[6]}")
        o(f"v_xor_b32 v{t[6]}, v{t[6]}, v{t[4]}")
        o(f"v_lshl_add_u32 v{V_STW[mt]}, v{t[6]}, 4, v{t[5]}")
    o(f"s_mul_i32 s{S_T1}, s{S_NH}, 4608")
    o(f"s_add_u32 s{S_T0}, s{S_T0}, s{S_T1}")
    for i in range(3):
        o(f"v_add_u32 v{t[4]}, {64*i}, v{V_LANE}")
        o(f"v_mul_u32_u24 v{t[5]}, 5462, v{t[4]}")
        o(f"v_lshrrev_b32 v{t[5]}, 16, v{t[5]}")
        o(f"v_mul_u32_u24 v{t[6]}, 12, v{t[5]}")
        o(f"v_sub_u32 v{t[6]}, v{t[4]}, v{t[6]}")
        o(f"v_bfe_u32 v{t[7]}, v{t[5]}, 1, 2")
        o(f"v_xor_b32 v{t[6]}, v{t[6]}, v{t[7]}")
        o(f"v_mul_u32_u24 v{t[5]}, 192, v{t[5]}")
        o(f"v_lshl_add_u32 v{t[5]}, v{t[6]}, 4, v{t[5]}")
        o(f"v_add_u32 v{V_STR[i]}, s{S_T0}, v{t[5]}")
    o(f"s_mul_i32 s{S_T0}, s{S_X0}, 192")
    o(f"s_add_u32 s{S_T0}, s{S_T0}, s{S_T1}")
    o(f"v_lshlrev_b32 v{t[4]}, 4, v{V_LANE}")
    o(f"v_add_u32 v{V_OA}, s{S_T0}, v{t[4]}")
    o(f"v_add_u32 v{t[4]}, 4096, v{V_OA}")
    o(f"v_cmp_gt_u32 vcc, 32, v{V_LANE}")
    o(f"v_mov_b32 v{t[5]}, 0x80000000")
    o("s_nop 0")
    o(f"v_cndmask_b32 v{V_OB}, v{t[5]}, v{t[4]}, vcc")
    o(f"s_lshl_b32 s{S_T0}, s{S_PG}, 1")
    o(f"s_add_u32 s{S_T0}, s{S_T0}, s{S_Y0}")
    o(f"s_mul_i32 s{S_OUT}, s{S_T0}, 73728")

    stamp()
    e.wait_vm(lambda tg: tg == ("w", 1))
    stamp()
    o("s_barrier")
    run(tr_thunks(0))
    do_init(INIT2)

    units = [(s, tap, ks, tt) for s in range(6) for tap in range(9) for ks in range(3) for tt in range(3)]
    NU = len(units)

    fill = []
    def add_fill(k, ths):
        for f in ths: fill.append((k, f))

    def epi_write_thunks(s):
        buf = s & 1; th = []
        for tt in range(3):
            for mt in range(3):
                a = acc(buf, tt, mt)
                th.append(lambda a=a: o(f"v_cvt_pk_bf16_f32 v{a}, v{a}, v{a+1}"))
                th.append(lambda a=a: o(f"v_cvt_pk_bf16_f32 v{a+1}, v{a+2}, v{a+3}"))
                th.append(lambda a=a, tt=tt, mt=mt: e.lds(f"ds_write_b64 v{V_STW[mt]}, v[{a}:{a+1}] offset:{tt*3072}", ("sw", s)))
        return th
    def epi_store_thunks(s):
        th = []
        for i in range(5):
            r = VO + 4 * i
            th.append(lambda i=i, r=r: e.lds(f"ds_read_b128 v[{r}:{r+3}], v{V_STR[i%3]} offset:{3072*(i//3)}", ("sr", s, i)))
        for i in range(5):
            r = VO + 4 * i
            def f(i=i, r=r):
                e.wait_lg(lambda tg: tg == ("sr", s, i))
                if i < 4:
                    e.vmem(f"buffer_store_dwordx4 v[{r}:{r+3}], v{V_OA}, s[12:15], s{S_OUT} offen offset:{1024*i} {STPOL}", "st")
                else:
                    e.vmem(f"buffer_store_dwordx4 v[{r}:{r+3}], v{V_OB}, s[12:15], s{S_OUT} offen {STPOL}", "st")
                    o(f"s_add_u32 s{S_OUT}, s{S_OUT}, {4*73728}")
            th.append(f)
        return th

    def issue_read(k):
        s, tap, ks, tt = units[k]
        di, dj = divmod(tap, 3)
        if k % 81 == 0 and s > 0:
            for d in range(3):
                o(f"v_add_u32 v{V_B[d]}, {2*ROWB}, v{V_B[d]}")
        r = VB0 + 4 * (k % RING)
        off = di * ROWB + tt * 3072 + ks * 256
        e.lds(f"ds_read_b128 v[{r}:{r+3}], v{V_B[dj]} offset:{off}", ("b", k))

    issued = 0
    pend_w = {}
    for k in range(NU):
        s, tap, ks, tt = units[k]
        while issued < min(NU, k + PREF + 1):
            ki = issued
            si, tapi = units[ki][0], units[ki][1]
            if ki % 27 == 0 and tapi >= 3:
                row = 2 * si + 1 + tapi // 3
                if si >= 1 and tapi == 3:
                    assert not any(True for (kk, f) in fill if getattr(f, "sw", False))
                    e.wait_lg(lambda tg: tg == ("sw", si - 1))
                if not (NOVW and si >= 1): e.wait_vm(lambda tg: tg == ("x", row))
                if not (NOBAR and si >= 1): o("s_barrier")
                if si >= 1 and tapi == 3 and not NOEPI and not NOST:
                    add_fill(k, epi_store_thunks(si - 1))
                if si >= 1:
                    while rows_issued[0] <= row + LOOK and rows_issued[0] < 14:
                        add_fill(k, row_thunks())
            issue_read(ki)
            issued += 1
        if s == 0 and k % 9 == 0:
            while any(getattr(f, "tr", -1) == tap for (_, f) in fill):
                fill.pop(0)[1]()
            e.wait_lg(lambda tg: tg == ("tr", tap))
            if tap + 1 <= 8:
                if tap >= 1:
                    stamp(d4=True)
                    e.wait_vm(lambda tg: tg == ("w", tap + 1))
                    stamp(d4=True)
                    o("s_barrier")
                    stamp(d4=True)
                ths = tr_thunks(tap + 1)
                for f in ths: f.tr = tap + 1
                add_fill(k, ths)
            elif tap == 8:
                o("s_barrier")
            xs = XS.get(tap, 0)
            for _ in range(xs):
                add_fill(k, row_thunks())
            for tw in range(tap + 1, min(8, tap + WLOOK) + 1):
                if tw not in w_issued:
                    w_issued.add(tw)
                    add_fill(k, w_dma_thunks(tw))
            if tap % 3 == 0: stamp()
        e.wait_lg(lambda tg: tg == ("b", k))
        r = VB0 + 4 * (k % RING)
        buf = s & 1
        for mt in range(3):
            a = acc(buf, tt, mt)
            wf, _ = wfrag(tap, ks, mt)
            cin = "0" if (tap == 0 and ks == 0) else f"v[{a}:{a+3}]"
            o(f"v_mfma_f32_16x16x32_bf16 v[{a}:{a+3}], {wf}, v[{r}:{r+3}], {cin}")
            nf = 2 if s == 0 else 1
            for _ in range(nf):
                if fill and fill[0][0] <= k and (s == 0 or mt != 1):
                    fill.pop(0)[1]()
        if k % 81 == 80 and s < 5:
            ths = epi_write_thunks(s) if not NOEPI else []
            for f in ths: f.sw = True
            add_fill(k + 4, ths)
            if s >= 1: stamp()
    assert rows_issued[0] == 14, rows_issued
    assert not fill
    o("s_nop 7")
    run(epi_write_thunks(5))
    o("s_waitcnt lgkmcnt(0)"); e.lg = []
    o("s_barrier")
    run(epi_store_thunks(5))
    if DIAG:
        stamp(True)
        o("s_waitcnt vmcnt(0)")
        stamp(True)
        if DIAG == 2:
            o("s_memrealtime s[70:71]"); o("s_waitcnt lgkmcnt(0)")
            o("s_sub_u32 s70, s70, s96"); o("s_add_u32 s70, s70, s64")
            nst[0] += 1
        o("s_and_b32 s57, s57, 0xffff")
        o("s_mov_b32 s58, 0x100000")
        o("s_mov_b32 s59, 0x00020000")
        o(f"s_lshl_b32 s60, s2, 2")
        o(f"s_add_u32 s60, s60, s{S_W}")
        o("s_lshl_b32 s60, s60, 6")
        o("v_mov_b32 v190, 0")
        for i in range(nst[0]):
            o(f"v_mov_b32 v191, s{64+2*i}")
            o(f"buffer_store_dword v191, v190, s[56:59], s60 offen offset:{4*i}")
        print("nstamps", nst[0])
    e.label("L_end")
    o("s_endpgm")
    return e.lines

HEADER = f"""; Kernarg layout for this problem (40 bytes, ptrs only, base s[0:1]):
; @launch grid=(256,1,1) block=(256,1,1) lds={LDS_BYTES}
.amdgcn_target "amdgcn-amd-amdhsa--gfx950"
.text
.globl {NAME}_kernel
.p2align 8
.type {NAME}_kernel,@function
{NAME}_kernel:
"""
FOOTER = f"""
.section .rodata,"a"
.p2align 6
.amdhsa_kernel {NAME}_kernel
  .amdhsa_next_free_vgpr 512
  .amdhsa_next_free_sgpr 100
  .amdhsa_accum_offset 256
  .amdhsa_group_segment_fixed_size 0
  .amdhsa_kernarg_size 40
  .amdhsa_user_sgpr_count 2
  .amdhsa_user_sgpr_kernarg_segment_ptr 1
  .amdhsa_system_sgpr_workgroup_id_x 1
.end_amdhsa_kernel
"""
if __name__ == "__main__":
    out = sys.argv[1] if len(sys.argv) > 1 else f"cdna_kernels/{NAME}.s"
    for u in range(768): assert (u * 1366) >> 16 == u // 48
    for q in range(320): assert (q * 5462) >> 16 == q // 12
    with open(out, "w") as f:
        f.write(HEADER + "\n".join(gen()) + FOOTER)
    print("wrote", out)
```

```python
import sys, os

NAME = "standalone__dilated_atrous__vision"
ROWB = 10240
RW = 6 * ROWB
ST = 14 * ROWB
DUMP = 163840 - 1024
LDS_BYTES = 163840
XBYTES = 384 * 384 * 192
WBYTES = 9 * 96 * 96 * 2
E = lambda k, d: int(os.environ.get(k, str(d)))
PREF = E("PREF", 6); RING = 8
LOOK = E("LOOK", 3)
DIAG = E("DIAG", 0)
PADT = E("PADT", 0)
XS = eval(os.environ.get("XS", "{0: 2, 2: 1, 4: 1, 8: 2}"))
INIT = os.environ.get("INIT", "w0,x,x,w1")
INIT2 = os.environ.get("INIT2", "w2")
WLOOK = E("WLOOK", 3)
NOST = E("NOST", 0); NOBAR = E("NOBAR", 0); NODMA = E("NODMA", 0); NOEPI = E("NOEPI", 0); NOVW = E("NOVW", 0)
STPOL = os.environ.get("STPOL", "sc1 nt")
XPOL = os.environ.get("XPOL", "nt")

class Em:
    def __init__(self):
        self.lines = []; self.vm = []; self.lg = []
    def o(self, s): self.lines.append("    " + s)
    def label(self, s): self.lines.append(s + ":")
    def vmem(self, s, tag): self.o(s); self.vm.append(tag)
    def lds(self, s, tag): self.o(s); self.lg.append(tag)
    def wait_vm(self, pred):
        idx = [i for i, t in enumerate(self.vm) if pred(t)]
        if not idx: return
        n = len(self.vm) - 1 - idx[-1]
        assert n <= 63
        self.o(f"s_waitcnt vmcnt({n})")
        self.vm = self.vm[idx[-1] + 1:]
    def wait_lg(self, pred):
        idx = [i for i, t in enumerate(self.lg) if pred(t)]
        if not idx: return
        n = min(15, len(self.lg) - 1 - idx[-1])
        self.o(f"s_waitcnt lgkmcnt({n})")
        self.lg = self.lg[len(self.lg) - n:] if n else []

S_W, S_NH, S_PG = 20, 21, 22
S_X0, S_Y0 = 23, 24
S_ROWOFF = 25
S_M0A, S_M0B, S_M0C, S_STRC = 26, 27, 28, 29
S_T0, S_T1, S_T2 = 30, 31, 32
S_OUT = 33
S_BY = 35
S_WM0, S_WM4 = 36, 37
S_WM4S = 38
V_LANE = 1
V_XOFF = (2, 3, 4)
V_WOFF, V_WOFF4 = 5, 12
V_B = (6, 7, 8)
V_WT = (9, 10)
V_STW = (13, 14, 15)
V_STR = (206, 207, 208)
V_OA, V_OB = 209, 210
V_T = list(range(190, 206))
VB0 = 16
VACC = 48
VW = 120
VO = 212

def wfrag(tap, ks, mt):
    f = (tap * 3 + ks) * 3 + mt
    if f < 64: return f"a[{4*f}:{4*f+3}]", ("a", 4 * f)
    b = VW + 4 * (f - 64)
    return f"v[{b}:{b+3}]", ("v", b)

def acc(buf, t, mt): return VACC + buf * 36 + (t * 3 + mt) * 4

def gen():
    e = Em(); o = e.o
    nst = [0]
    def stamp(force=False, d4=False):
        if not DIAG: return
        if DIAG in (2, 5) and not force: return
        if DIAG == 4 and not (force or d4): return
        if nst[0] >= 15: return
        i = nst[0]; nst[0] += 1
        assert i < 16
        o("s_waitcnt lgkmcnt(0)"); e.lg = []
        o(f"s_mem{'real' if DIAG == 3 else ''}time s[{64+2*i}:{65+2*i}]")
        o("s_waitcnt lgkmcnt(0)")
    t = V_T
    o("s_cmp_ge_u32 s2, 256")
    o("s_cbranch_scc1 L_end")
    o("s_load_dwordx4 s[4:7], s[0:1], 0")
    o("s_load_dwordx2 s[12:13], s[0:1], 16")
    if DIAG:
        o("s_load_dwordx2 s[56:57], s[0:1], %d" % (24 if DIAG == 5 else 32))
    stamp(True)
    if PADT:
        o("s_memrealtime s[96:97]")
    if DIAG in (2, 5):
        o("s_memrealtime s[96:97]"); o("s_waitcnt lgkmcnt(0)")
    o("v_lshrrev_b32 v190, 6, v0")
    o(f"v_and_b32 v{V_LANE}, 63, v0")
    o("s_nop 0")
    o(f"v_readfirstlane_b32 s{S_W}, v190")
    o(f"s_and_b32 s{S_T0}, s2, 7")
    o(f"s_mul_i32 s{S_X0}, s{S_T0}, 48")
    o(f"s_lshr_b32 s{S_T0}, s2, 3")
    o(f"s_and_b32 s{S_T1}, s{S_T0}, 1")
    o(f"s_lshr_b32 s{S_BY}, s{S_T0}, 1")
    o(f"s_mul_i32 s{S_Y0}, s{S_BY}, 24")
    o(f"s_add_u32 s{S_Y0}, s{S_Y0}, s{S_T1}")
    o("s_nop 1")
    o(f"s_and_b32 s{S_NH}, s{S_W}, 1")
    o(f"s_lshr_b32 s{S_PG}, s{S_W}, 1")
    o(f"s_lshl_b32 s{S_T0}, s{S_W}, 10")
    o(f"v_lshlrev_b32 v{V_WOFF}, 4, v{V_LANE}")
    o(f"v_add_u32 v{V_WOFF}, s{S_T0}, v{V_WOFF}")
    o(f"s_add_u32 s{S_WM0}, s{S_T0}, {RW}")
    o(f"s_cmp_lt_u32 s{S_W}, 2")
    o(f"s_cselect_b32 s{S_T1}, 0, 0x80000000")
    o(f"v_or_b32 v{V_WOFF4}, s{S_T1}, v{V_WOFF}")
    o(f"s_cselect_b32 s{S_WM4S}, 1, 0")
    o(f"s_lshl_b32 s{S_T0}, s{S_W}, 6")
    o(f"s_sub_u32 s{S_T1}, s{S_X0}, 2")
    for j in range(3):
        o(f"v_add_u32 v{t[0]}, s{S_T0}, v{V_LANE}")
        if j: o(f"v_add_u32 v{t[0]}, {256*j}, v{t[0]}")
        o(f"v_mul_u32_u24 v{t[1]}, 1366, v{t[0]}")
        o(f"v_lshrrev_b32 v{t[1]}, 16, v{t[1]}")
        o(f"v_mul_u32_u24 v{t[2]}, 48, v{t[1]}")
        o(f"v_sub_u32 v{t[2]}, v{t[0]}, v{t[2]}")
        o(f"v_lshrrev_b32 v{t[3]}, 3, v{t[2]}")
        o(f"v_and_b32 v{t[4]}, 1, v{t[1]}")
        o(f"v_xor_b32 v{t[3]}, v{t[3]}, v{t[4]}")
        o(f"v_bfe_u32 v{t[4]}, v{t[2]}, 1, 2")
        o(f"v_lshl_add_u32 v{t[4]}, v{t[1]}, 2, v{t[4]}")
        o(f"v_and_b32 v{t[5]}, 1, v{t[2]}")
        o(f"v_lshlrev_b32 v{t[5]}, 4, v{t[5]}")
        o(f"v_lshl_add_u32 v{t[5]}, v{t[3]}, 5, v{t[5]}")
        o(f"v_add_u32 v{t[6]}, s{S_T1}, v{t[4]}")
        o(f"v_cmp_gt_u32 vcc, 52, v{t[4]}")
        o(f"v_mov_b32 v{t[7]}, 0x7fff")
        o("s_nop 0")
        o(f"v_cndmask_b32 v{t[6]}, v{t[7]}, v{t[6]}, vcc")
        o(f"v_mov_b32 v{t[7]}, 192")
        o(f"v_mad_u32_u24 v{t[5]}, v{t[6]}, v{t[7]}, v{t[5]}")
        o(f"v_mov_b32 v{t[8]}, 0x180")
        o(f"v_cmp_gt_u32 vcc, v{t[8]}, v{t[6]}")
        o(f"v_mov_b32 v{t[7]}, 0x80000000")
        o("s_nop 0")
        o(f"v_cndmask_b32 v{V_XOFF[j]}, v{t[7]}, v{t[5]}, vcc")
    o(f"s_lshl_b32 s{S_M0A}, s{S_W}, 10")
    o(f"s_add_u32 s{S_M0B}, s{S_M0A}, 4096")
    o(f"s_add_u32 s{S_M0C}, s{S_M0A}, 8192")
    o(f"s_mov_b32 s{S_STRC}, {ROWB}")
    o(f"s_cmp_lt_u32 s{S_W}, 2")
    o(f"s_cselect_b32 s{S_M0C}, s{S_M0C}, {DUMP}")
    o(f"s_cselect_b32 s{S_STRC}, s{S_STRC}, 0")
    o(f"s_mul_i32 s{S_ROWOFF}, s{S_Y0}, 73728")
    o(f"s_sub_u32 s{S_ROWOFF}, s{S_ROWOFF}, {2*73728}")
    o("s_waitcnt lgkmcnt(0)")
    o("s_mov_b32 s8, s6")
    o("s_and_b32 s9, s7, 0xffff")
    o(f"s_mov_b32 s10, {WBYTES}")
    o("s_mov_b32 s11, 0x00020000")
    o("s_and_b32 s5, s5, 0xffff")
    o(f"s_mov_b32 s6, {XBYTES}")
    o("s_mov_b32 s7, 0x00020000")
    o("s_and_b32 s13, s13, 0xffff")
    o(f"s_mov_b32 s14, {XBYTES}")
    o("s_mov_b32 s15, 0x00020000")

    def w_dma_thunks(tap):
        slot = tap % 5
        th = []
        for k in range(5):
            def f(k=k):
                if k < 4:
                    o(f"s_add_u32 m0, s{S_WM0}, {slot*18432 + 4096*k}")
                    o(f"s_mov_b32 s{S_T2}, {tap*18432 + 4096*k}")
                    e.vmem(f"buffer_load_dwordx4 v{V_WOFF}, s[8:11], s{S_T2} offen lds", ("w", tap))
                else:
                    o(f"s_add_u32 s{S_T1}, s{S_WM0}, {slot*18432 + 4096*4}")
                    o(f"s_cmp_eq_u32 s{S_WM4S}, 1")
                    o(f"s_cselect_b32 m0, s{S_T1}, {DUMP}")
                    o(f"s_mov_b32 s{S_T2}, {tap*18432 + 4096*4}")
                    e.vmem(f"buffer_load_dwordx4 v{V_WOFF4}, s[8:11], s{S_T2} offen lds", ("w", tap))
            th.append(f)
        return th

    rows_issued = [0]
    def row_thunks():
        ir = rows_issued[0]
        assert ir < 14
        rows_issued[0] += 1
        th = []
        for j, sm in enumerate((S_M0A, S_M0B, S_M0C)):
            def f(j=j, sm=sm):
                if j == 0:
                    if ir == 0:
                        o(f"s_cmp_eq_u32 s{S_BY}, 0")
                        o(f"s_cselect_b32 s{S_T0}, 0x40000000, s{S_ROWOFF}")
                    elif ir == 13:
                        o(f"s_cmp_eq_u32 s{S_BY}, 15")
                        o(f"s_cselect_b32 s{S_T0}, 0x40000000, s{S_ROWOFF}")
                    else:
                        o(f"s_mov_b32 s{S_T0}, s{S_ROWOFF}")
                    o(f"s_add_u32 s{S_ROWOFF}, s{S_ROWOFF}, {2*73728}")
                o(f"s_mov_b32 m0, s{sm}")
                if j < 2: o(f"s_add_u32 s{sm}, s{sm}, {ROWB}")
                else: o(f"s_add_u32 s{sm}, s{sm}, s{S_STRC}")
                if not (NODMA and ir >= 6): e.vmem(f"buffer_load_dwordx4 v{V_XOFF[j]}, s[4:7], s{S_T0} offen {XPOL} lds", ("x", ir))
            th.append(f)
        return th
    def run(ths):
        for f in ths: f()

    def tr_thunks(tap):
        slot = tap % 5
        base, off0 = (V_WT[0], slot * 18432) if slot < 3 else (V_WT[1], (slot - 3) * 18432)
        th = []
        for ks in range(3):
            for mt in range(3):
                _, (kind, r) = wfrag(tap, ks, mt)
                for h in range(2):
                    off = off0 + ks * 6144 + h * 768 + mt * 32
                    th.append(lambda kind=kind, r=r, h=h, off=off, base=base: e.lds(
                        f"ds_read_b64_tr_b16 {kind}[{r+2*h}:{r+2*h+1}], v{base} offset:{off}", ("tr", tap)))
        return th

    w_issued = set()
    def do_init(seq):
        for it in seq.split(","):
            if not it: continue
            if it == "x": run(row_thunks())
            else:
                run(w_dma_thunks(int(it[1:]))); w_issued.add(int(it[1:]))
    do_init(INIT)

    o(f"v_and_b32 v{t[0]}, 15, v{V_LANE}")
    o(f"v_lshrrev_b32 v{t[1]}, 4, v{V_LANE}")
    o(f"v_lshrrev_b32 v{t[2]}, 1, v{t[1]}")
    o(f"v_and_b32 v{t[3]}, 1, v{t[1]}")
    o(f"s_mul_i32 s{S_T0}, s{S_PG}, {ROWB}")
    for dj in range(3):
        o(f"v_add_u32 v{t[4]}, {2*dj}, v{t[0]}")
        o(f"v_lshrrev_b32 v{t[5]}, 2, v{t[4]}")
        o(f"v_and_b32 v{t[6]}, 1, v{t[5]}")
        o(f"v_xor_b32 v{t[6]}, v{t[6]}, v{t[2]}")
        o(f"v_mul_u32_u24 v{t[5]}, 768, v{t[5]}")
        o(f"v_lshl_add_u32 v{t[5]}, v{t[6]}, 7, v{t[5]}")
        o(f"v_and_b32 v{t[4]}, 3, v{t[4]}")
        o(f"v_lshl_add_u32 v{t[5]}, v{t[4]}, 5, v{t[5]}")
        o(f"v_lshl_add_u32 v{t[5]}, v{t[3]}, 4, v{t[5]}")
        o(f"v_add_u32 v{V_B[dj]}, s{S_T0}, v{t[5]}")
    o(f"v_bfe_u32 v{t[4]}, v{V_LANE}, 2, 2")
    o(f"v_lshl_add_u32 v{t[4]}, v{t[1]}, 3, v{t[4]}")
    o(f"v_mul_u32_u24 v{t[4]}, 192, v{t[4]}")
    o(f"v_and_b32 v{t[5]}, 3, v{V_LANE}")
    o(f"v_lshl_add_u32 v{t[4]}, v{t[5]}, 3, v{t[4]}")
    o(f"s_mul_i32 s{S_T0}, s{S_NH}, 96")
    o(f"s_add_u32 s{S_T1}, s{S_T0}, {RW}")
    o(f"v_add_u32 v{V_WT[0]}, s{S_T1}, v{t[4]}")
    o(f"v_add_u32 v{V_WT[1]}, {3*18432}, v{V_WT[0]}")
    o(f"s_mul_i32 s{S_T0}, s{S_PG}, 9216")
    o(f"s_add_u32 s{S_T0}, s{S_T0}, {ST}")
    o(f"s_mul_i32 s{S_T1}, s{S_NH}, 6")
    o(f"v_bfe_u32 v{t[4]}, v{t[0]}, 1, 2")
    o(f"v_mul_u32_u24 v{t[5]}, 192, v{t[0]}")
    o(f"v_lshl_add_u32 v{t[5]}, v{t[3]}, 3, v{t[5]}")
    o(f"v_add_u32 v{t[5]}, s{S_T0}, v{t[5]}")
    for mt in range(3):
        o(f"v_add_u32 v{t[6]}, s{S_T1}, v{t[2]}")
        if mt: o(f"v_add_u32 v{t[6]}, {2*mt}, v{t[6]}")
        o(f"v_xor_b32 v{t[6]}, v{t[6]}, v{t[4]}")
        o(f"v_lshl_add_u32 v{V_STW[mt]}, v{t[6]}, 4, v{t[5]}")
    o(f"s_mul_i32 s{S_T1}, s{S_NH}, 4608")
    o(f"s_add_u32 s{S_T0}, s{S_T0}, s{S_T1}")
    for i in range(3):
        o(f"v_add_u32 v{t[4]}, {64*i}, v{V_LANE}")
        o(f"v_mul_u32_u24 v{t[5]}, 5462, v{t[4]}")
        o(f"v_lshrrev_b32 v{t[5]}, 16, v{t[5]}")
        o(f"v_mul_u32_u24 v{t[6]}, 12, v{t[5]}")
        o(f"v_sub_u32 v{t[6]}, v{t[4]}, v{t[6]}")
        o(f"v_bfe_u32 v{t[7]}, v{t[5]}, 1, 2")
        o(f"v_xor_b32 v{t[6]}, v{t[6]}, v{t[7]}")
        o(f"v_mul_u32_u24 v{t[5]}, 192, v{t[5]}")
        o(f"v_lshl_add_u32 v{t[5]}, v{t[6]}, 4, v{t[5]}")
        o(f"v_add_u32 v{V_STR[i]}, s{S_T0}, v{t[5]}")
    o(f"s_mul_i32 s{S_T0}, s{S_X0}, 192")
    o(f"s_add_u32 s{S_T0}, s{S_T0}, s{S_T1}")
    o(f"v_lshlrev_b32 v{t[4]}, 4, v{V_LANE}")
    o(f"v_add_u32 v{V_OA}, s{S_T0}, v{t[4]}")
    o(f"v_add_u32 v{t[4]}, 4096, v{V_OA}")
    o(f"v_cmp_gt_u32 vcc, 32, v{V_LANE}")
    o(f"v_mov_b32 v{t[5]}, 0x80000000")
    o("s_nop 0")
    o(f"v_cndmask_b32 v{V_OB}, v{t[5]}, v{t[4]}, vcc")
    o(f"s_lshl_b32 s{S_T0}, s{S_PG}, 1")
    o(f"s_add_u32 s{S_T0}, s{S_T0}, s{S_Y0}")
    o(f"s_mul_i32 s{S_OUT}, s{S_T0}, 73728")

    stamp()
    e.wait_vm(lambda tg: tg == ("w", 1))
    stamp()
    o("s_barrier")
    run(tr_thunks(0))
    do_init(INIT2)

    units = [(s, tap, ks, tt) for s in range(6) for tap in range(9) for ks in range(3) for tt in range(3)]
    NU = len(units)

    fill = []
    def add_fill(k, ths):
        for f in ths: fill.append((k, f))

    def epi_write_thunks(s):
        buf = s & 1; th = []
        for tt in range(3):
            for mt in range(3):
                a = acc(buf, tt, mt)
                th.append(lambda a=a: o(f"v_cvt_pk_bf16_f32 v{a}, v{a}, v{a+1}"))
                th.append(lambda a=a: o(f"v_cvt_pk_bf16_f32 v{a+1}, v{a+2}, v{a+3}"))
                th.append(lambda a=a, tt=tt, mt=mt: e.lds(f"ds_write_b64 v{V_STW[mt]}, v[{a}:{a+1}] offset:{tt*3072}", ("sw", s)))
        return th
    def epi_store_thunks(s):
        th = []
        for i in range(5):
            r = VO + 4 * i
            th.append(lambda i=i, r=r: e.lds(f"ds_read_b128 v[{r}:{r+3}], v{V_STR[i%3]} offset:{3072*(i//3)}", ("sr", s, i)))
        for i in range(5):
            r = VO + 4 * i
            def f(i=i, r=r):
                e.wait_lg(lambda tg: tg == ("sr", s, i))
                if i < 4:
                    e.vmem(f"buffer_store_dwordx4 v[{r}:{r+3}], v{V_OA}, s[12:15], s{S_OUT} offen offset:{1024*i} {STPOL}", "st")
                else:
                    e.vmem(f"buffer_store_dwordx4 v[{r}:{r+3}], v{V_OB}, s[12:15], s{S_OUT} offen {STPOL}", "st")
                    o(f"s_add_u32 s{S_OUT}, s{S_OUT}, {4*73728}")
            th.append(f)
        return th

    def issue_read(k):
        s, tap, ks, tt = units[k]
        di, dj = divmod(tap, 3)
        if k % 81 == 0 and s > 0:
            for d in range(3):
                o(f"v_add_u32 v{V_B[d]}, {2*ROWB}, v{V_B[d]}")
        r = VB0 + 4 * (k % RING)
        off = di * ROWB + tt * 3072 + ks * 256
        e.lds(f"ds_read_b128 v[{r}:{r+3}], v{V_B[dj]} offset:{off}", ("b", k))

    issued = 0
    pend_w = {}
    for k in range(NU):
        s, tap, ks, tt = units[k]
        while issued < min(NU, k + PREF + 1):
            ki = issued
            si, tapi = units[ki][0], units[ki][1]
            if ki % 27 == 0 and tapi >= 3:
                row = 2 * si + 1 + tapi // 3
                if si >= 1 and tapi == 3:
                    assert not any(True for (kk, f) in fill if getattr(f, "sw", False))
                    e.wait_lg(lambda tg: tg == ("sw", si - 1))
                if not (NOVW and si >= 1): e.wait_vm(lambda tg: tg == ("x", row))
                if not (NOBAR and si >= 1): o("s_barrier")
                if si >= 1 and tapi == 3 and not NOEPI and not NOST:
                    add_fill(k, epi_store_thunks(si - 1))
                if si >= 1:
                    while rows_issued[0] <= row + LOOK and rows_issued[0] < 14:
                        add_fill(k, row_thunks())
            issue_read(ki)
            issued += 1
        if s == 0 and k % 9 == 0:
            while any(getattr(f, "tr", -1) == tap for (_, f) in fill):
                fill.pop(0)[1]()
            e.wait_lg(lambda tg: tg == ("tr", tap))
            if tap + 1 <= 8:
                if tap >= 1:
                    stamp(d4=True)
                    e.wait_vm(lambda tg: tg == ("w", tap + 1))
                    stamp(d4=True)
                    o("s_barrier")
                    stamp(d4=True)
                ths = tr_thunks(tap + 1)
                for f in ths: f.tr = tap + 1
                add_fill(k, ths)
            elif tap == 8:
                o("s_barrier")
            xs = XS.get(tap, 0)
            for _ in range(xs):
                add_fill(k, row_thunks())
            for tw in range(tap + 1, min(8, tap + WLOOK) + 1):
                if tw not in w_issued:
                    w_issued.add(tw)
                    add_fill(k, w_dma_thunks(tw))
            if tap % 3 == 0: stamp()
        e.wait_lg(lambda tg: tg == ("b", k))
        r = VB0 + 4 * (k % RING)
        buf = s & 1
        for mt in range(3):
            a = acc(buf, tt, mt)
            wf, _ = wfrag(tap, ks, mt)
            cin = "0" if (tap == 0 and ks == 0) else f"v[{a}:{a+3}]"
            o(f"v_mfma_f32_16x16x32_bf16 v[{a}:{a+3}], {wf}, v[{r}:{r+3}], {cin}")
            nf = 2 if s == 0 else 1
            for _ in range(nf):
                if fill and fill[0][0] <= k and (s == 0 or mt != 1):
                    fill.pop(0)[1]()
        if k % 81 == 80 and s < 5:
            ths = epi_write_thunks(s) if not NOEPI else []
            for f in ths: f.sw = True
            add_fill(k + 4, ths)
            if s >= 1: stamp()
    assert rows_issued[0] == 14, rows_issued
    assert not fill
    o("s_nop 7")
    run(epi_write_thunks(5))
    o("s_waitcnt lgkmcnt(0)"); e.lg = []
    o("s_barrier")
    run(epi_store_thunks(5))
    if PADT:
        o("s_waitcnt vmcnt(0)")
        e.label("L_pad")
        o("s_memrealtime s[70:71]"); o("s_waitcnt lgkmcnt(0)")
        o("s_sub_u32 s70, s70, s96")
        o(f"s_cmp_lt_u32 s70, {PADT}")
        o("s_cbranch_scc1 L_pad")
    if DIAG == 5:
        o("s_waitcnt vmcnt(0)")
        stamp(True)
        o("s_memrealtime s[70:71]"); o("s_waitcnt lgkmcnt(0)")
        o("s_and_b32 s60, s2, 63")
        o(f"s_or_b32 s60, s60, s{S_W}")
        o("s_cmp_lg_u32 s60, 0")
        o("s_cbranch_scc1 L_end")
        o("s_sub_u32 s64, s66, s64")
        o("s_sub_u32 s65, s70, s96")
        o("s_and_b32 s57, s57, 0xffff")
        o("s_mov_b32 s58, 256")
        o("s_mov_b32 s59, 0x00020000")
        o("s_lshr_b32 s60, s2, 6")
        o("s_lshl_b32 s60, s60, 4")
        o("v_mov_b32 v190, 0")
        for i, r in enumerate((64, 65, 96, 70)):
            o(f"v_mov_b32 v191, s{r}")
            o(f"buffer_store_dword v191, v190, s[56:59], s60 offen offset:{4*i}")
    elif DIAG:
        stamp(True)
        o("s_waitcnt vmcnt(0)")
        stamp(True)
        if DIAG == 2:
            o("s_memrealtime s[70:71]"); o("s_waitcnt lgkmcnt(0)")
            o("s_sub_u32 s70, s70, s96"); o("s_add_u32 s70, s70, s64")
            nst[0] += 1
        o("s_and_b32 s57, s57, 0xffff")
        o("s_mov_b32 s58, 0x100000")
        o("s_mov_b32 s59, 0x00020000")
        o(f"s_lshl_b32 s60, s2, 2")
        o(f"s_add_u32 s60, s60, s{S_W}")
        o("s_lshl_b32 s60, s60, 6")
        o("v_mov_b32 v190, 0")
        for i in range(nst[0]):
            o(f"v_mov_b32 v191, s{64+2*i}")
            o(f"buffer_store_dword v191, v190, s[56:59], s60 offen offset:{4*i}")
        print("nstamps", nst[0])
    e.label("L_end")
    o("s_endpgm")
    return e.lines

HEADER = f"""; Kernarg layout for this problem (40 bytes, ptrs only, base s[0:1]):
; @launch grid=(256,1,1) block=(256,1,1) lds={LDS_BYTES}
.amdgcn_target "amdgcn-amd-amdhsa--gfx950"
.text
.globl {NAME}_kernel
.p2align 8
.type {NAME}_kernel,@function
{NAME}_kernel:
"""
FOOTER = f"""
.section .rodata,"a"
.p2align 6
.amdhsa_kernel {NAME}_kernel
  .amdhsa_next_free_vgpr 512
  .amdhsa_next_free_sgpr 100
  .amdhsa_accum_offset 256
  .amdhsa_group_segment_fixed_size 0
  .amdhsa_kernarg_size 40
  .amdhsa_user_sgpr_count 2
  .amdhsa_user_sgpr_kernarg_segment_ptr 1
  .amdhsa_system_sgpr_workgroup_id_x 1
.end_amdhsa_kernel
"""
if __name__ == "__main__":
    out = sys.argv[1] if len(sys.argv) > 1 else f"cdna_kernels/{NAME}.s"
    for u in range(768): assert (u * 1366) >> 16 == u // 48
    for q in range(320): assert (q * 5462) >> 16 == q // 12
    with open(out, "w") as f:
        f.write(HEADER + "\n".join(gen()) + FOOTER)
    print("wrote", out)
```

```python
import sys, os

NAME = "standalone__dilated_atrous__vision"
ROWB = 10240
RW = 90112
LDS_BYTES = 163840
XBYTES = 384 * 384 * 192
WBYTES = 9 * 96 * 96 * 2
E = lambda k, d: int(os.environ.get(k, str(d)))
PREF = E("PREF", 6); RING = 8
DIAG = E("DIAG", 0)
PADT = E("PADT", 0)
ORDER = eval(os.environ.get("ORDER", "[(0,0),(0,1),(1,0),(1,1)]+[(s,t) for t in range(2,9) for s in (0,1)]"))
INIT = os.environ.get("INIT", "w0,p,w1,p")
DORDER = os.environ.get("DORDER", "w2,w3,p,w4,w5,w6,w7,w8,p,p,p,p")
WLEAD = E("WLEAD", 12)
W1K = E("W1K", 1)
PACE = E("PACE", 8)
PACE2 = E("PACE2", 20)
PACES = E("PACES", 12)
NTM = E("NTM", 2)
STPOL = os.environ.get("STPOL", "sc1 nt")
XPOL = os.environ.get("XPOL", "nt")
NOST = E("NOST", 0)
EPW = E("EPW", 11)

class Em:
    def __init__(self):
        self.lines = []; self.vm = []; self.lg = []; self.n = 0
    def o(self, s): self.lines.append("    " + s); self.n += 1
    def label(self, s): self.lines.append(s + ":")
    def vmem(self, s, tag): self.o(s); self.vm.append(tag)
    def lds(self, s, tag): self.o(s); self.lg.append(tag)
    def wait_vm(self, pred):
        idx = [i for i, t in enumerate(self.vm) if pred(t)]
        if not idx: return
        n = len(self.vm) - 1 - idx[-1]
        assert n <= 63
        self.o(f"s_waitcnt vmcnt({n})")
        self.vm = self.vm[idx[-1] + 1:]
    def wait_lg(self, pred):
        idx = [i for i, t in enumerate(self.lg) if pred(t)]
        if not idx: return
        n = min(15, len(self.lg) - 1 - idx[-1])
        self.o(f"s_waitcnt lgkmcnt({n})")
        self.lg = self.lg[len(self.lg) - n:] if n else []

S_W, S_NH, S_PG = 20, 21, 22
S_X0, S_Y0 = 23, 24
S_ROWOFF, S_XS, S_XM0 = 25, 26, 27
S_WM0, S_WS = 28, 29
S_T0, S_T1, S_T2 = 30, 31, 32
S_OUT, S_OUT2 = 33, 34
S_BY = 35
V_LANE = 1
V_XOFF = (2, 3, 4, 5, 6)
V_B = (7, 8, 9)
V_WA = (10, 11)
V_WB = (12, 13)
V_WOFF = 14
V_OA, V_OB = 15, 188
V_SW = (206, 207)
V_SR = (208, 209, 210)
VO = 212
V_T = list(range(190, 206))
VB0 = 16
VACC = 48
VW = 120

def wfrag(tap, ks, mt):
    f = (tap * 3 + ks) * 3 + mt
    if f < 64: return f"a[{4*f}:{4*f+3}]", ("a", 4 * f)
    b = VW + 4 * (f - 64)
    return f"v[{b}:{b+3}]", ("v", b)

def acc(buf, t, mt): return VACC + buf * 36 + (t * 3 + mt) * 4
def wlast(t): return (18 * t + 17) // 4

def gen():
    e = Em(); o = e.o
    nst = [0]
    def stamp(force=False):
        if not DIAG: return
        if DIAG in (2, 5) and not force: return
        if nst[0] >= 15: return
        i = nst[0]; nst[0] += 1
        o("s_waitcnt lgkmcnt(0)"); e.lg = []
        o(f"s_mem{'real' if DIAG == 3 else ''}time s[{64+2*i}:{65+2*i}]")
        o("s_waitcnt lgkmcnt(0)")
    t = V_T
    o("s_cmp_ge_u32 s2, 256")
    o("s_cbranch_scc1 L_end")
    o("s_load_dwordx4 s[4:7], s[0:1], 0")
    o("s_load_dwordx2 s[12:13], s[0:1], 16")
    if DIAG:
        o("s_load_dwordx2 s[56:57], s[0:1], %d" % (24 if DIAG == 5 else 32))
    stamp(True)
    if PADT:
        o("s_memrealtime s[96:97]")
    if DIAG in (2, 5):
        o("s_memrealtime s[96:97]"); o("s_waitcnt lgkmcnt(0)")
    o("v_lshrrev_b32 v190, 6, v0")
    o(f"v_and_b32 v{V_LANE}, 63, v0")
    o("s_nop 0")
    o(f"v_readfirstlane_b32 s{S_W}, v190")
    o(f"s_and_b32 s{S_T0}, s2, 7")
    o(f"s_mul_i32 s{S_X0}, s{S_T0}, 48")
    o(f"s_lshr_b32 s{S_T0}, s2, 3")
    o(f"s_and_b32 s{S_T1}, s{S_T0}, 1")
    o(f"s_lshr_b32 s{S_BY}, s{S_T0}, 1")
    o(f"s_mul_i32 s{S_Y0}, s{S_BY}, 24")
    o(f"s_add_u32 s{S_Y0}, s{S_Y0}, s{S_T1}")
    o("s_nop 1")
    o(f"s_and_b32 s{S_NH}, s{S_W}, 1")
    o(f"s_lshr_b32 s{S_PG}, s{S_W}, 1")
    o(f"s_lshl_b32 s{S_T0}, s{S_W}, 10")
    o(f"v_lshlrev_b32 v{V_WOFF}, 4, v{V_LANE}")
    o(f"v_add_u32 v{V_WOFF}, s{S_T0}, v{V_WOFF}")
    o(f"s_add_u32 s{S_WM0}, s{S_T0}, {RW}")
    o(f"s_mul_i32 s{S_T0}, s{S_NH}, 320")
    o(f"s_sub_u32 s{S_T1}, s{S_X0}, 2")
    o(f"v_mov_b32 v{t[9]}, 0x7fff")
    o(f"v_mov_b32 v{t[10]}, 192")
    o(f"v_mov_b32 v{t[11]}, 0x180")
    o(f"v_mov_b32 v{t[12]}, 0x80000000")
    o(f"v_add_u32 v{t[13]}, s{S_T0}, v{V_LANE}")
    for j in range(5):
        if j: o(f"v_add_u32 v{t[0]}, {64*j}, v{t[13]}")
        u = t[0] if j else t[13]
        o(f"v_mul_u32_u24 v{t[1]}, 1366, v{u}")
        o(f"v_lshrrev_b32 v{t[1]}, 16, v{t[1]}")
        o(f"v_mul_u32_u24 v{t[2]}, 48, v{t[1]}")
        o(f"v_sub_u32 v{t[2]}, v{u}, v{t[2]}")
        o(f"v_lshrrev_b32 v{t[3]}, 3, v{t[2]}")
        o(f"v_and_b32 v{t[4]}, 1, v{t[1]}")
        o(f"v_xor_b32 v{t[3]}, v{t[3]}, v{t[4]}")
        o(f"v_bfe_u32 v{t[4]}, v{t[2]}, 1, 2")
        o(f"v_lshl_add_u32 v{t[4]}, v{t[1]}, 2, v{t[4]}")
        o(f"v_cmp_gt_u32 vcc, 52, v{t[4]}")
        o(f"v_and_b32 v{t[5]}, 1, v{t[2]}")
        o(f"v_lshlrev_b32 v{t[5]}, 4, v{t[5]}")
        o(f"v_lshl_add_u32 v{t[5]}, v{t[3]}, 5, v{t[5]}")
        o(f"v_add_u32 v{t[6]}, s{S_T1}, v{t[4]}")
        o(f"v_cndmask_b32 v{t[6]}, v{t[9]}, v{t[6]}, vcc")
        o(f"v_cmp_gt_u32 vcc, v{t[11]}, v{t[6]}")
        o(f"v_mad_u32_u24 v{t[5]}, v{t[6]}, v{t[10]}, v{t[5]}")
        o("s_nop 0")
        o(f"v_cndmask_b32 v{V_XOFF[j]}, v{t[12]}, v{t[5]}, vcc")
    o(f"s_mul_i32 s{S_XM0}, s{S_W}, 5120")
    o(f"s_lshl_b32 s{S_T0}, s{S_PG}, 1")
    o(f"s_add_u32 s{S_T0}, s{S_T0}, s{S_Y0}")
    o(f"s_mul_i32 s{S_OUT}, s{S_T0}, 73728")
    o(f"s_add_u32 s{S_OUT2}, s{S_OUT}, 6144")
    o(f"s_sub_u32 s{S_ROWOFF}, s{S_OUT}, {2*73728}")
    o("s_waitcnt lgkmcnt(0)")
    o("s_mov_b32 s8, s6")
    o("s_and_b32 s9, s7, 0xffff")
    o(f"s_mov_b32 s10, {WBYTES}")
    o("s_mov_b32 s11, 0x00020000")
    o("s_and_b32 s5, s5, 0xffff")
    o(f"s_mov_b32 s6, {XBYTES}")
    o("s_mov_b32 s7, 0x00020000")
    o("s_and_b32 s13, s13, 0xffff")
    o(f"s_mov_b32 s14, {XBYTES}")
    o("s_mov_b32 s15, 0x00020000")

    released = set()
    tr_done = set()
    wr = [0]; pr = [0]
    def w_round():
        R = wr[0]; wr[0] += 1
        need = set(range((4 * (R - 18) + 3) // 18 + 1)) if R >= 18 else set()
        def f():
            o(f"s_add_u32 m0, s{S_WM0}, {(R % 18) * 4096}")
            o(f"s_mov_b32 s{S_WS}, {R*4096}")
            e.vmem(f"buffer_load_dwordx4 v{V_WOFF}, s[8:11], s{S_WS} offen lds", ("w", R))
        return (need, f)
    def p_dmas():
        p = pr[0]; pr[0] += 1
        need = set(range(9)) if p >= 4 else set()
        th = []
        for j in range(5):
            def f(j=j):
                o(f"s_add_u32 m0, s{S_XM0}, {p*20480 + j*1024}")
                if j == 0:
                    if p == 0:
                        o(f"s_cmp_lt_i32 s{S_ROWOFF}, 0")
                        o(f"s_cselect_b32 s{S_XS}, 0x40000000, s{S_ROWOFF}")
                    else:
                        o(f"s_mov_b32 s{S_XS}, s{S_ROWOFF}")
                elif j == 1:
                    o(f"s_add_u32 s{S_ROWOFF}, s{S_ROWOFF}, {4*73728}")
                else:
                    o("s_nop 0")
                e.vmem(f"buffer_load_dwordx4 v{V_XOFF[j]}, s[4:7], s{S_XS} offen {XPOL} lds", ("x", p))
            th.append((need, f))
        return th
    def expand(seq):
        out = []
        for it in seq.split(","):
            if not it: continue
            if it == "p": out += p_dmas()
            elif it[0] == "w":
                while wr[0] <= wlast(int(it[1:])): out.append(w_round())
            elif it[0] == "r":
                for _ in range(int(it[1:])): out.append(w_round())
        return out

    def tr_thunks(tap):
        slot = tap % 4
        hi, off0 = slot // 2, (slot % 2) * 18432
        th = []
        for ks in range(3):
            for mt in range(3):
                _, (kind, r) = wfrag(tap, ks, mt)
                for h in range(2):
                    base = (V_WA if mt < 2 else V_WB)[hi]
                    off = off0 + ks * 6144 + h * 768 + (mt * 8 if mt < 2 else 0)
                    th.append(lambda kind=kind, r=r, h=h, off=off, base=base: e.lds(
                        f"ds_read_b64_tr_b16 {kind}[{r+2*h}:{r+2*h+1}], v{base} offset:{off}", ("tr", tap)))
        return th

    for need, f in expand(INIT):
        assert not need
        f(); issued_tags.append(e.vm[-1])
    dq = expand(DORDER)
    assert wr[0] == 41 and pr[0] == 7

    o(f"v_and_b32 v{t[0]}, 15, v{V_LANE}")
    o(f"v_lshrrev_b32 v{t[1]}, 4, v{V_LANE}")
    o(f"v_lshrrev_b32 v{t[2]}, 1, v{t[1]}")
    o(f"v_and_b32 v{t[3]}, 1, v{t[1]}")
    o(f"s_mul_i32 s{S_T0}, s{S_PG}, {ROWB}")
    for dj in range(3):
        o(f"v_add_u32 v{t[4]}, {2*dj}, v{t[0]}")
        o(f"v_lshrrev_b32 v{t[5]}, 2, v{t[4]}")
        o(f"v_and_b32 v{t[6]}, 1, v{t[5]}")
        o(f"v_xor_b32 v{t[6]}, v{t[6]}, v{t[2]}")
        o(f"v_mul_u32_u24 v{t[5]}, 768, v{t[5]}")
        o(f"v_lshl_add_u32 v{t[5]}, v{t[6]}, 7, v{t[5]}")
        o(f"v_and_b32 v{t[4]}, 3, v{t[4]}")
        o(f"v_lshl_add_u32 v{t[5]}, v{t[4]}, 5, v{t[5]}")
        o(f"v_lshl_add_u32 v{t[5]}, v{t[3]}, 4, v{t[5]}")
        o(f"v_add_u32 v{V_B[dj]}, s{S_T0}, v{t[5]}")
    o(f"v_bfe_u32 v{t[4]}, v{V_LANE}, 2, 2")
    o(f"v_lshl_add_u32 v{t[4]}, v{t[1]}, 3, v{t[4]}")
    o(f"v_mul_u32_u24 v{t[4]}, 192, v{t[4]}")
    o(f"v_and_b32 v{t[5]}, 3, v{V_LANE}")
    o(f"s_mul_i32 s{S_T0}, s{S_NH}, 96")
    o(f"s_add_u32 s{S_T1}, s{S_T0}, {RW}")
    o(f"v_add_u32 v{t[4]}, s{S_T1}, v{t[4]}")
    o(f"v_lshl_add_u32 v{V_WA[0]}, v{t[5]}, 4, v{t[4]}")
    o(f"v_lshl_add_u32 v{V_WB[0]}, v{t[5]}, 3, v{t[4]}")
    o(f"v_add_u32 v{V_WB[0]}, 64, v{V_WB[0]}")
    o(f"v_add_u32 v{V_WA[1]}, 36864, v{V_WA[0]}")
    o(f"v_add_u32 v{V_WB[1]}, 36864, v{V_WB[0]}")
    o(f"s_mul_i32 s{S_T0}, s{S_PG}, 9216")
    o(f"s_mul_i32 s{S_T1}, s{S_NH}, 6")
    o(f"v_lshrrev_b32 v{t[4]}, 2, v{t[0]}")
    o(f"v_mul_u32_u24 v{t[5]}, 192, v{t[0]}")
    o(f"v_add_u32 v{t[5]}, s{S_T0}, v{t[5]}")
    o(f"v_add_u32 v{t[6]}, s{S_T1}, v{t[1]}")
    o(f"v_xor_b32 v{t[6]}, v{t[6]}, v{t[4]}")
    o(f"v_lshl_add_u32 v{V_SW[0]}, v{t[6]}, 4, v{t[5]}")
    o(f"v_add_u32 v{t[6]}, s{S_T1}, v{t[2]}")
    o(f"v_add_u32 v{t[6]}, 4, v{t[6]}")
    o(f"v_xor_b32 v{t[6]}, v{t[6]}, v{t[4]}")
    o(f"v_lshl_add_u32 v{t[5]}, v{t[3]}, 3, v{t[5]}")
    o(f"v_lshl_add_u32 v{V_SW[1]}, v{t[6]}, 4, v{t[5]}")
    o(f"s_mul_i32 s{S_T2}, s{S_NH}, 24")
    for i in range(3):
        o(f"v_add_u32 v{t[4]}, {64*i}, v{V_LANE}")
        o(f"v_mul_u32_u24 v{t[5]}, 5462, v{t[4]}")
        o(f"v_lshrrev_b32 v{t[5]}, 16, v{t[5]}")
        o(f"v_mul_u32_u24 v{t[6]}, 12, v{t[5]}")
        o(f"v_sub_u32 v{t[6]}, v{t[4]}, v{t[6]}")
        o(f"v_add_u32 v{t[5]}, s{S_T2}, v{t[5]}")
        o(f"v_bfe_u32 v{t[7]}, v{t[5]}, 2, 2")
        o(f"v_xor_b32 v{t[6]}, v{t[6]}, v{t[7]}")
        o(f"v_mul_u32_u24 v{t[5]}, 192, v{t[5]}")
        o(f"v_lshl_add_u32 v{t[5]}, v{t[6]}, 4, v{t[5]}")
        o(f"v_add_u32 v{V_SR[i]}, s{S_T0}, v{t[5]}")
    o(f"s_mul_i32 s{S_T1}, s{S_NH}, 4608")
    o(f"s_mul_i32 s{S_T0}, s{S_X0}, 192")
    o(f"s_add_u32 s{S_T0}, s{S_T0}, s{S_T1}")
    o(f"v_lshlrev_b32 v{t[4]}, 4, v{V_LANE}")
    o(f"v_add_u32 v{V_OA}, s{S_T0}, v{t[4]}")
    o(f"v_add_u32 v{t[4]}, 4096, v{V_OA}")
    o(f"v_cmp_gt_u32 vcc, 32, v{V_LANE}")
    o(f"v_mov_b32 v{t[5]}, 0x80000000")
    o("s_nop 0")
    o(f"v_cndmask_b32 v{V_OB}, v{t[5]}, v{t[4]}, vcc")

    units = []
    for (s, tap) in ORDER:
        units += [(s, tap, ks, tt) for ks in range(3) for tt in range(3)]
    for s in range(2, 6):
        ntm = NTM if s == 5 else 0
        for tap in range(9 - ntm):
            units += [(s, tap, ks, tt) for ks in range(3) for tt in range(3)]
        for tt in range(3):
            units += [(s, tap, ks, tt) for tap in range(9 - ntm, 9) for ks in range(3)]
    NU = len(units)
    assert NU == 486 and len(set(units)) == NU
    first_use = {}; first_pair = {}; last_tile = {}; first_tile = {}
    for k, (s, tap, ks, tt) in enumerate(units):
        first_use.setdefault(tap, k)
        di = tap // 3
        for r in (2 * s + di, 2 * s + di + 1): first_pair.setdefault(r // 2, k)
        last_tile[(s, tt)] = k
        first_tile.setdefault((s, tt), k)
    sync = {}
    for tap in range(1, 9):
        sync.setdefault(max(W1K, first_use[tap] - WLEAD), []).append(("w", tap))
    for p in range(1, 7):
        sync.setdefault(first_pair[p] - PREF, []).append(("x", p))
    sync.setdefault(first_use[8] + 3, []).append(("rel", 0))
    sync.setdefault(max(last_tile[(0, 2)] + EPW, last_tile[(1, 2)] + 1), []).append(("st", 0))
    for s_ in range(1, 5):
        sync.setdefault(first_pair[s_ + 2] - PREF, []).append(("st", s_))
    for k in sorted(sync):
        if k not in sync: continue
        if all(a == "w" for a, _ in sync[k]):
            for d in (1, 2, 3):
                if k + d in sync and any(a == "x" for a, _ in sync[k + d]):
                    sync[k + d] += sync.pop(k); break
    synced_pairs = {0}
    st_done = set()
    sq = []

    stamp()
    e.wait_vm(lambda tg: tg == ("w", wlast(0)) or tg == ("x", 0))
    stamp()
    o("s_barrier")
    for f in tr_thunks(0): f()

    fill = []
    def add_fill(k, ths):
        for f in ths: fill.append((k, f))
    acc_w = {}

    def epi_thunks(s, tt):
        buf = s & 1; th = []
        a, b, c = (acc(buf, tt, mt) for mt in range(3))
        def cvt(d, s0, grp):
            def f():
                gap = e.n - acc_w[grp] - 1
                if gap < 9: o(f"s_nop {8 - gap}")
                o(f"v_cvt_pk_bf16_f32 v{d}, v{s0}, v{s0+1}")
            return f
        th += [cvt(a, a, a), cvt(a + 1, a + 2, a), cvt(a + 2, b, b), cvt(a + 3, b + 2, b), cvt(c, c, c), cvt(c + 1, c + 2, c)]
        off = buf * 20480 + tt * 3072
        th.insert(4, lambda: e.lds(f"ds_write_b128 v{V_SW[0]}, v[{a}:{a+3}] offset:{off}", ("sw", s)))
        th.append(lambda: e.lds(f"ds_write_b64 v{V_SW[1]}, v[{c}:{c+1}] offset:{off}", ("sw", s)))
        for f in th: f.epi = (s, tt)
        return th
    def store_thunks(s):
        th = []
        for i in range(5):
            r = VO + 4 * i
            th.append(lambda i=i, r=r: e.lds(f"ds_read_b128 v[{r}:{r+3}], v{V_SR[i%3]} offset:{(s&1)*20480 + 3072*(i//3)}", ("sr", s, i)))
        for i in range(5):
            r = VO + 4 * i
            def f(i=i, r=r):
                e.wait_lg(lambda tg: tg == ("sr", s, i))
                if i < 4:
                    e.vmem(f"buffer_store_dwordx4 v[{r}:{r+3}], v{V_OA}, s[12:15], s{S_OUT} offen offset:{1024*i} {STPOL}", "st")
                else:
                    e.vmem(f"buffer_store_dwordx4 v[{r}:{r+3}], v{V_OB}, s[12:15], s{S_OUT} offen {STPOL}", "st")
                    o(f"s_add_u32 s{S_OUT}, s{S_OUT}, {4*73728}")
            th.append(f)
        for f in th: f.st = s
        return th

    bbase = [0]
    def issue_read(k):
        s, tap, ks, tt = units[k]
        di, dj = divmod(tap, 3)
        if s >= bbase[0] + 2:
            bbase[0] += 2
            for d in range(3):
                o(f"v_add_u32 v{V_B[d]}, {4*ROWB}, v{V_B[d]}")
        assert bbase[0] <= s < bbase[0] + 2
        for r in (2 * s + di, 2 * s + di + 1): assert r // 2 in synced_pairs, (k, r)
        r = VB0 + 4 * (k % RING)
        off = (2 * (s - bbase[0]) + di) * ROWB + tt * 3072 + ks * 256
        e.lds(f"ds_read_b128 v[{r}:{r+3}], v{V_B[dj]} offset:{off}", ("b", k))

    issued = 0
    gap = 0; next_dma = 0
    pend1 = []
    for k in range(NU):
        s, tap, ks, tt = units[k]
        if k in sync:
            ev = sync[k]
            def pending(a, v):
                return (a == "w" and not any(tg == ("w", wlast(v)) for tg in issued_tags)) or \
                       (a == "x" and sum(1 for tg in issued_tags if tg == ("x", v)) < 5)
            while any(pending(a, v) for a, v in ev):
                need, f = dq.pop(0)
                assert need <= released, ("ring", k, need, released)
                f(); issued_tags.append(e.vm[-1])
            tags = [("w", wlast(v)) if a == "w" else ("x", v) for a, v in ev if a in "wx"]
            for a, v in ev:
                if a == "st":
                    while any(getattr(f, "epi", (-1,))[0] == v or getattr(f, "st", -1) == v - 1 for (_, f) in fill):
                        fill.pop(0)[1]()
                    while sq: sq.pop(0)[1]()
                    e.wait_lg(lambda tg: tg == ("sw", v))
            if tags: e.wait_vm(lambda tg: tg in tags)
            o("s_barrier")
            released |= tr_done
            for a, v in ev:
                if a == "w":
                    ths = tr_thunks(v)
                    for f in ths: f.tr = v
                    add_fill(k, ths)
                elif a == "x": synced_pairs.add(v)
                elif a == "st":
                    ths = store_thunks(v)
                    add_fill(k, ths[:5]); sq.extend((k + 2, f) for f in ths[5:]); st_done.add(v)
        while issued < min(NU, k + PREF + 1):
            issue_read(issued)
            issued += 1
        if first_use[tap] == k:
            while any(getattr(f, "tr", -1) == tap for (_, f) in fill):
                fill.pop(0)[1]()
            e.wait_lg(lambda tg: tg == ("tr", tap))
            tr_done.add(tap)
        if first_tile[(s, tt)] == k and s >= 2:
            fl = 0
            while any(getattr(f, "epi", None) == (s - 2, tt) for (_, f) in fill):
                fill.pop(0)[1](); fl = 1
            if fl: o("s_nop 1")
        if k % 81 == 0 or (k < 162 and k % 27 == 0): stamp()
        e.wait_lg(lambda tg: tg == ("b", k))
        r = VB0 + 4 * (k % RING)
        buf = s & 1
        for mt in range(3):
            a = acc(buf, tt, mt)
            wf, _ = wfrag(tap, ks, mt)
            cin = "0" if first_tile[(s, tt)] == k else f"v[{a}:{a+3}]"
            o(f"v_mfma_f32_16x16x32_bf16 v[{a}:{a+3}], {wf}, v[{r}:{r+3}], {cin}")
            acc_w[a] = e.n - 1
            gap += 1
            did = 0
            if sq and gap >= next_dma and sq[0][0] <= k and not any(getattr(f, "st", -1) >= 0 for _, f in fill):
                sq.pop(0)[1]()
                next_dma = gap + PACES
                did = 1
            elif dq and gap >= next_dma and dq[0][0] <= released:
                dq.pop(0)[1](); issued_tags.append(e.vm[-1])
                next_dma = gap + (PACE if k < 162 else PACE2)
                did = 1
            nf = 2 if len(fill) > 12 else 1
            for _ in range(nf - did):
                if fill and fill[0][0] <= k:
                    fill.pop(0)[1]()
        if last_tile[(s, tt)] == k and k < NU - 1:
            if s == 1: pend1.append(epi_thunks(s, tt))
            else: add_fill(k + 3, epi_thunks(s, tt))
        if pend1 and 0 in st_done:
            for th in pend1: add_fill(k + 1, th)
            pend1.clear()
    assert not dq
    while fill: fill.pop(0)[1]()
    while sq: sq.pop(0)[1]()
    for f in epi_thunks(5, 2): f()
    o("s_waitcnt lgkmcnt(0)"); e.lg = []
    o("s_barrier")
    for f in store_thunks(5): f()
    if PADT:
        o("s_waitcnt vmcnt(0)")
        e.label("L_pad")
        o("s_memrealtime s[70:71]"); o("s_waitcnt lgkmcnt(0)")
        o("s_sub_u32 s70, s70, s96")
        o(f"s_cmp_lt_u32 s70, {PADT}")
        o("s_cbranch_scc1 L_pad")
    if DIAG == 5:
        o("s_waitcnt vmcnt(0)")
        stamp(True)
        o("s_memrealtime s[70:71]"); o("s_waitcnt lgkmcnt(0)")
        o("s_and_b32 s60, s2, 63")
        o(f"s_or_b32 s60, s60, s{S_W}")
        o("s_cmp_lg_u32 s60, 0")
        o("s_cbranch_scc1 L_end")
        o("s_sub_u32 s64, s66, s64")
        o("s_sub_u32 s65, s70, s96")
        o("s_and_b32 s57, s57, 0xffff")
        o("s_mov_b32 s58, 256")
        o("s_mov_b32 s59, 0x00020000")
        o("s_lshr_b32 s60, s2, 6")
        o("s_lshl_b32 s60, s60, 4")
        o("v_mov_b32 v190, 0")
        for i, r in enumerate((64, 65, 96, 70)):
            o(f"v_mov_b32 v191, s{r}")
            o(f"buffer_store_dword v191, v190, s[56:59], s60 offen offset:{4*i}")
    elif DIAG:
        stamp(True)
        o("s_waitcnt vmcnt(0)")
        stamp(True)
        if DIAG == 2:
            o("s_memrealtime s[70:71]"); o("s_waitcnt lgkmcnt(0)")
            o("s_sub_u32 s70, s70, s96"); o("s_add_u32 s70, s70, s64")
            nst[0] += 1
        o("s_and_b32 s57, s57, 0xffff")
        o("s_mov_b32 s58, 0x100000")
        o("s_mov_b32 s59, 0x00020000")
        o(f"s_lshl_b32 s60, s2, 2")
        o(f"s_add_u32 s60, s60, s{S_W}")
        o("s_lshl_b32 s60, s60, 6")
        o("v_mov_b32 v190, 0")
        for i in range(nst[0]):
            o(f"v_mov_b32 v191, s{64+2*i}")
            o(f"buffer_store_dword v191, v190, s[56:59], s60 offen offset:{4*i}")
        print("nstamps", nst[0])
    e.label("L_end")
    o("s_endpgm")
    return e.lines

issued_tags = []

HEADER = f"""; Kernarg layout for this problem (40 bytes, ptrs only, base s[0:1]):
; @launch grid=(256,1,1) block=(256,1,1) lds={LDS_BYTES}
.amdgcn_target "amdgcn-amd-amdhsa--gfx950"
.text
.globl {NAME}_kernel
.p2align 8
.type {NAME}_kernel,@function
{NAME}_kernel:
"""
FOOTER = f"""
.section .rodata,"a"
.p2align 6
.amdhsa_kernel {NAME}_kernel
  .amdhsa_next_free_vgpr 512
  .amdhsa_next_free_sgpr 100
  .amdhsa_accum_offset 256
  .amdhsa_group_segment_fixed_size 0
  .amdhsa_kernarg_size 40
  .amdhsa_user_sgpr_count 2
  .amdhsa_user_sgpr_kernarg_segment_ptr 1
  .amdhsa_system_sgpr_workgroup_id_x 1
.end_amdhsa_kernel
"""
if __name__ == "__main__":
    out = sys.argv[1] if len(sys.argv) > 1 else f"cdna_kernels/{NAME}.s"
    for u in range(768): assert (u * 1366) >> 16 == u // 48
    for q in range(320): assert (q * 5462) >> 16 == q // 12
    with open(out, "w") as f:
        f.write(HEADER + "\n".join(gen()) + FOOTER)
    print("wrote", out)
```

```python
import sys, os

NAME = "standalone__dilated_atrous__vision"
ROWB = 10240
RW = 90112
LDS_BYTES = 163840
XBYTES = 384 * 384 * 192
WBYTES = 9 * 96 * 96 * 2
E = lambda k, d: int(os.environ.get(k, str(d)))
PREF = E("PREF", 6); RING = 8
DIAG = E("DIAG", 0)
PADT = E("PADT", 0)
PADS = E("PADS", 0); PADK = E("PADK", 0)
ORDER = eval(os.environ.get("ORDER", "[(0,0),(0,1),(1,0),(1,1)]+[(s,t) for t in range(2,9) for s in (0,1)]"))
INIT = os.environ.get("INIT", "w0,p,w1,p")
DORDER = os.environ.get("DORDER", "w2,w3,p,w4,w5,w6,w7,w8,p,p,p,p")
WLEAD = E("WLEAD", 12)
W1K = E("W1K", 1)
PACE = E("PACE", 8)
PACE2 = E("PACE2", 20)
PACES = E("PACES", 12)
NTM = E("NTM", 2)
STPOL = os.environ.get("STPOL", "sc1 nt")
XPOL = os.environ.get("XPOL", "nt")
NOST = E("NOST", 0)
EPW = E("EPW", 11)

class Em:
    def __init__(self):
        self.lines = []; self.vm = []; self.lg = []; self.n = 0
    def o(self, s): self.lines.append("    " + s); self.n += 1
    def label(self, s): self.lines.append(s + ":")
    def vmem(self, s, tag): self.o(s); self.vm.append(tag)
    def lds(self, s, tag): self.o(s); self.lg.append(tag)
    def wait_vm(self, pred):
        idx = [i for i, t in enumerate(self.vm) if pred(t)]
        if not idx: return
        n = len(self.vm) - 1 - idx[-1]
        assert n <= 63
        self.o(f"s_waitcnt vmcnt({n})")
        self.vm = self.vm[idx[-1] + 1:]
    def wait_lg(self, pred):
        idx = [i for i, t in enumerate(self.lg) if pred(t)]
        if not idx: return
        n = min(15, len(self.lg) - 1 - idx[-1])
        self.o(f"s_waitcnt lgkmcnt({n})")
        self.lg = self.lg[len(self.lg) - n:] if n else []

S_W, S_NH, S_PG = 20, 21, 22
S_X0, S_Y0 = 23, 24
S_ROWOFF, S_XS, S_XM0 = 25, 26, 27
S_WM0, S_WS = 28, 29
S_T0, S_T1, S_T2 = 30, 31, 32
S_OUT, S_OUT2 = 33, 34
S_BY = 35
V_LANE = 1
V_XOFF = (2, 3, 4, 5, 6)
V_B = (7, 8, 9)
V_WA = (10, 11)
V_WB = (12, 13)
V_WOFF = 14
V_OA, V_OB = 15, 188
V_SW = (206, 207)
V_SR = (208, 209, 210)
VO = 212
V_T = list(range(190, 206))
VB0 = 16
VACC = 48
VW = 120

def wfrag(tap, ks, mt):
    f = (tap * 3 + ks) * 3 + mt
    if f < 64: return f"a[{4*f}:{4*f+3}]", ("a", 4 * f)
    b = VW + 4 * (f - 64)
    return f"v[{b}:{b+3}]", ("v", b)

def acc(buf, t, mt): return VACC + buf * 36 + (t * 3 + mt) * 4
def wlast(t): return (18 * t + 17) // 4

def gen():
    e = Em(); o = e.o
    nst = [0]
    def stamp(force=False):
        if not DIAG: return
        if DIAG in (2, 5) and not force: return
        if nst[0] >= 15: return
        i = nst[0]; nst[0] += 1
        o("s_waitcnt lgkmcnt(0)"); e.lg = []
        o(f"s_mem{'real' if DIAG == 3 else ''}time s[{64+2*i}:{65+2*i}]")
        o("s_waitcnt lgkmcnt(0)")
    t = V_T
    o("s_cmp_ge_u32 s2, 256")
    o("s_cbranch_scc1 L_end")
    o("s_load_dwordx4 s[4:7], s[0:1], 0")
    o("s_load_dwordx2 s[12:13], s[0:1], 16")
    if DIAG:
        o("s_load_dwordx2 s[56:57], s[0:1], %d" % (24 if DIAG == 5 else 32))
    stamp(True)
    if PADT or PADS:
        o("s_memrealtime s[96:97]")
    if DIAG in (2, 5):
        o("s_memrealtime s[96:97]"); o("s_waitcnt lgkmcnt(0)")
    o("v_lshrrev_b32 v190, 6, v0")
    o(f"v_and_b32 v{V_LANE}, 63, v0")
    o("s_nop 0")
    o(f"v_readfirstlane_b32 s{S_W}, v190")
    o(f"s_and_b32 s{S_T0}, s2, 7")
    o(f"s_mul_i32 s{S_X0}, s{S_T0}, 48")
    o(f"s_lshr_b32 s{S_T0}, s2, 3")
    o(f"s_and_b32 s{S_T1}, s{S_T0}, 1")
    o(f"s_lshr_b32 s{S_BY}, s{S_T0}, 1")
    o(f"s_mul_i32 s{S_Y0}, s{S_BY}, 24")
    o(f"s_add_u32 s{S_Y0}, s{S_Y0}, s{S_T1}")
    o("s_nop 1")
    o(f"s_and_b32 s{S_NH}, s{S_W}, 1")
    o(f"s_lshr_b32 s{S_PG}, s{S_W}, 1")
    o(f"s_lshl_b32 s{S_T0}, s{S_W}, 10")
    o(f"v_lshlrev_b32 v{V_WOFF}, 4, v{V_LANE}")
    o(f"v_add_u32 v{V_WOFF}, s{S_T0}, v{V_WOFF}")
    o(f"s_add_u32 s{S_WM0}, s{S_T0}, {RW}")
    o(f"s_mul_i32 s{S_T0}, s{S_NH}, 320")
    o(f"s_sub_u32 s{S_T1}, s{S_X0}, 2")
    o(f"v_mov_b32 v{t[9]}, 0x7fff")
    o(f"v_mov_b32 v{t[10]}, 192")
    o(f"v_mov_b32 v{t[11]}, 0x180")
    o(f"v_mov_b32 v{t[12]}, 0x80000000")
    o(f"v_add_u32 v{t[13]}, s{S_T0}, v{V_LANE}")
    for j in range(5):
        if j: o(f"v_add_u32 v{t[0]}, {64*j}, v{t[13]}")
        u = t[0] if j else t[13]
        o(f"v_mul_u32_u24 v{t[1]}, 1366, v{u}")
        o(f"v_lshrrev_b32 v{t[1]}, 16, v{t[1]}")
        o(f"v_mul_u32_u24 v{t[2]}, 48, v{t[1]}")
        o(f"v_sub_u32 v{t[2]}, v{u}, v{t[2]}")
        o(f"v_lshrrev_b32 v{t[3]}, 3, v{t[2]}")
        o(f"v_and_b32 v{t[4]}, 1, v{t[1]}")
        o(f"v_xor_b32 v{t[3]}, v{t[3]}, v{t[4]}")
        o(f"v_bfe_u32 v{t[4]}, v{t[2]}, 1, 2")
        o(f"v_lshl_add_u32 v{t[4]}, v{t[1]}, 2, v{t[4]}")
        o(f"v_cmp_gt_u32 vcc, 52, v{t[4]}")
        o(f"v_and_b32 v{t[5]}, 1, v{t[2]}")
        o(f"v_lshlrev_b32 v{t[5]}, 4, v{t[5]}")
        o(f"v_lshl_add_u32 v{t[5]}, v{t[3]}, 5, v{t[5]}")
        o(f"v_add_u32 v{t[6]}, s{S_T1}, v{t[4]}")
        o(f"v_cndmask_b32 v{t[6]}, v{t[9]}, v{t[6]}, vcc")
        o(f"v_cmp_gt_u32 vcc, v{t[11]}, v{t[6]}")
        o(f"v_mad_u32_u24 v{t[5]}, v{t[6]}, v{t[10]}, v{t[5]}")
        o("s_nop 0")
        o(f"v_cndmask_b32 v{V_XOFF[j]}, v{t[12]}, v{t[5]}, vcc")
    o(f"s_mul_i32 s{S_XM0}, s{S_W}, 5120")
    o(f"s_lshl_b32 s{S_T0}, s{S_PG}, 1")
    o(f"s_add_u32 s{S_T0}, s{S_T0}, s{S_Y0}")
    o(f"s_mul_i32 s{S_OUT}, s{S_T0}, 73728")
    o(f"s_add_u32 s{S_OUT2}, s{S_OUT}, 6144")
    o(f"s_sub_u32 s{S_ROWOFF}, s{S_OUT}, {2*73728}")
    o("s_waitcnt lgkmcnt(0)")
    o("s_mov_b32 s8, s6")
    o("s_and_b32 s9, s7, 0xffff")
    o(f"s_mov_b32 s10, {WBYTES}")
    o("s_mov_b32 s11, 0x00020000")
    o("s_and_b32 s5, s5, 0xffff")
    o(f"s_mov_b32 s6, {XBYTES}")
    o("s_mov_b32 s7, 0x00020000")
    o("s_and_b32 s13, s13, 0xffff")
    o(f"s_mov_b32 s14, {XBYTES}")
    o("s_mov_b32 s15, 0x00020000")

    released = set()
    tr_done = set()
    wr = [0]; pr = [0]
    def w_round():
        R = wr[0]; wr[0] += 1
        need = set(range((4 * (R - 18) + 3) // 18 + 1)) if R >= 18 else set()
        def f():
            o(f"s_add_u32 m0, s{S_WM0}, {(R % 18) * 4096}")
            o(f"s_mov_b32 s{S_WS}, {R*4096}")
            e.vmem(f"buffer_load_dwordx4 v{V_WOFF}, s[8:11], s{S_WS} offen lds", ("w", R))
        return (need, f)
    def p_dmas():
        p = pr[0]; pr[0] += 1
        need = set(range(9)) if p >= 4 else set()
        th = []
        for j in range(5):
            def f(j=j):
                o(f"s_add_u32 m0, s{S_XM0}, {p*20480 + j*1024}")
                if j == 0:
                    if p == 0:
                        o(f"s_cmp_lt_i32 s{S_ROWOFF}, 0")
                        o(f"s_cselect_b32 s{S_XS}, 0x40000000, s{S_ROWOFF}")
                    else:
                        o(f"s_mov_b32 s{S_XS}, s{S_ROWOFF}")
                elif j == 1:
                    o(f"s_add_u32 s{S_ROWOFF}, s{S_ROWOFF}, {4*73728}")
                else:
                    o("s_nop 0")
                e.vmem(f"buffer_load_dwordx4 v{V_XOFF[j]}, s[4:7], s{S_XS} offen {XPOL} lds", ("x", p))
            th.append((need, f))
        return th
    def expand(seq):
        out = []
        for it in seq.split(","):
            if not it: continue
            if it == "p": out += p_dmas()
            elif it[0] == "w":
                while wr[0] <= wlast(int(it[1:])): out.append(w_round())
            elif it[0] == "r":
                for _ in range(int(it[1:])): out.append(w_round())
        return out

    def tr_thunks(tap):
        slot = tap % 4
        hi, off0 = slot // 2, (slot % 2) * 18432
        th = []
        for ks in range(3):
            for mt in range(3):
                _, (kind, r) = wfrag(tap, ks, mt)
                for h in range(2):
                    base = (V_WA if mt < 2 else V_WB)[hi]
                    off = off0 + ks * 6144 + h * 768 + (mt * 8 if mt < 2 else 0)
                    th.append(lambda kind=kind, r=r, h=h, off=off, base=base: e.lds(
                        f"ds_read_b64_tr_b16 {kind}[{r+2*h}:{r+2*h+1}], v{base} offset:{off}", ("tr", tap)))
        return th

    for need, f in expand(INIT):
        assert not need
        f(); issued_tags.append(e.vm[-1])
    dq = expand(DORDER)
    assert wr[0] == 41 and pr[0] == 7

    o(f"v_and_b32 v{t[0]}, 15, v{V_LANE}")
    o(f"v_lshrrev_b32 v{t[1]}, 4, v{V_LANE}")
    o(f"v_lshrrev_b32 v{t[2]}, 1, v{t[1]}")
    o(f"v_and_b32 v{t[3]}, 1, v{t[1]}")
    o(f"s_mul_i32 s{S_T0}, s{S_PG}, {ROWB}")
    for dj in range(3):
        o(f"v_add_u32 v{t[4]}, {2*dj}, v{t[0]}")
        o(f"v_lshrrev_b32 v{t[5]}, 2, v{t[4]}")
        o(f"v_and_b32 v{t[6]}, 1, v{t[5]}")
        o(f"v_xor_b32 v{t[6]}, v{t[6]}, v{t[2]}")
        o(f"v_mul_u32_u24 v{t[5]}, 768, v{t[5]}")
        o(f"v_lshl_add_u32 v{t[5]}, v{t[6]}, 7, v{t[5]}")
        o(f"v_and_b32 v{t[4]}, 3, v{t[4]}")
        o(f"v_lshl_add_u32 v{t[5]}, v{t[4]}, 5, v{t[5]}")
        o(f"v_lshl_add_u32 v{t[5]}, v{t[3]}, 4, v{t[5]}")
        o(f"v_add_u32 v{V_B[dj]}, s{S_T0}, v{t[5]}")
    o(f"v_bfe_u32 v{t[4]}, v{V_LANE}, 2, 2")
    o(f"v_lshl_add_u32 v{t[4]}, v{t[1]}, 3, v{t[4]}")
    o(f"v_mul_u32_u24 v{t[4]}, 192, v{t[4]}")
    o(f"v_and_b32 v{t[5]}, 3, v{V_LANE}")
    o(f"s_mul_i32 s{S_T0}, s{S_NH}, 96")
    o(f"s_add_u32 s{S_T1}, s{S_T0}, {RW}")
    o(f"v_add_u32 v{t[4]}, s{S_T1}, v{t[4]}")
    o(f"v_lshl_add_u32 v{V_WA[0]}, v{t[5]}, 4, v{t[4]}")
    o(f"v_lshl_add_u32 v{V_WB[0]}, v{t[5]}, 3, v{t[4]}")
    o(f"v_add_u32 v{V_WB[0]}, 64, v{V_WB[0]}")
    o(f"v_add_u32 v{V_WA[1]}, 36864, v{V_WA[0]}")
    o(f"v_add_u32 v{V_WB[1]}, 36864, v{V_WB[0]}")
    o(f"s_mul_i32 s{S_T0}, s{S_PG}, 9216")
    o(f"s_mul_i32 s{S_T1}, s{S_NH}, 6")
    o(f"v_lshrrev_b32 v{t[4]}, 2, v{t[0]}")
    o(f"v_mul_u32_u24 v{t[5]}, 192, v{t[0]}")
    o(f"v_add_u32 v{t[5]}, s{S_T0}, v{t[5]}")
    o(f"v_add_u32 v{t[6]}, s{S_T1}, v{t[1]}")
    o(f"v_xor_b32 v{t[6]}, v{t[6]}, v{t[4]}")
    o(f"v_lshl_add_u32 v{V_SW[0]}, v{t[6]}, 4, v{t[5]}")
    o(f"v_add_u32 v{t[6]}, s{S_T1}, v{t[2]}")
    o(f"v_add_u32 v{t[6]}, 4, v{t[6]}")
    o(f"v_xor_b32 v{t[6]}, v{t[6]}, v{t[4]}")
    o(f"v_lshl_add_u32 v{t[5]}, v{t[3]}, 3, v{t[5]}")
    o(f"v_lshl_add_u32 v{V_SW[1]}, v{t[6]}, 4, v{t[5]}")
    o(f"s_mul_i32 s{S_T2}, s{S_NH}, 24")
    for i in range(3):
        o(f"v_add_u32 v{t[4]}, {64*i}, v{V_LANE}")
        o(f"v_mul_u32_u24 v{t[5]}, 5462, v{t[4]}")
        o(f"v_lshrrev_b32 v{t[5]}, 16, v{t[5]}")
        o(f"v_mul_u32_u24 v{t[6]}, 12, v{t[5]}")
        o(f"v_sub_u32 v{t[6]}, v{t[4]}, v{t[6]}")
        o(f"v_add_u32 v{t[5]}, s{S_T2}, v{t[5]}")
        o(f"v_bfe_u32 v{t[7]}, v{t[5]}, 2, 2")
        o(f"v_xor_b32 v{t[6]}, v{t[6]}, v{t[7]}")
        o(f"v_mul_u32_u24 v{t[5]}, 192, v{t[5]}")
        o(f"v_lshl_add_u32 v{t[5]}, v{t[6]}, 4, v{t[5]}")
        o(f"v_add_u32 v{V_SR[i]}, s{S_T0}, v{t[5]}")
    o(f"s_mul_i32 s{S_T1}, s{S_NH}, 4608")
    o(f"s_mul_i32 s{S_T0}, s{S_X0}, 192")
    o(f"s_add_u32 s{S_T0}, s{S_T0}, s{S_T1}")
    o(f"v_lshlrev_b32 v{t[4]}, 4, v{V_LANE}")
    o(f"v_add_u32 v{V_OA}, s{S_T0}, v{t[4]}")
    o(f"v_add_u32 v{t[4]}, 4096, v{V_OA}")
    o(f"v_cmp_gt_u32 vcc, 32, v{V_LANE}")
    o(f"v_mov_b32 v{t[5]}, 0x80000000")
    o("s_nop 0")
    o(f"v_cndmask_b32 v{V_OB}, v{t[5]}, v{t[4]}, vcc")

    units = []
    for (s, tap) in ORDER:
        units += [(s, tap, ks, tt) for ks in range(3) for tt in range(3)]
    for s in range(2, 6):
        ntm = NTM if s == 5 else 0
        for tap in range(9 - ntm):
            units += [(s, tap, ks, tt) for ks in range(3) for tt in range(3)]
        for tt in range(3):
            units += [(s, tap, ks, tt) for tap in range(9 - ntm, 9) for ks in range(3)]
    NU = len(units)
    assert NU == 486 and len(set(units)) == NU
    first_use = {}; first_pair = {}; last_tile = {}; first_tile = {}
    for k, (s, tap, ks, tt) in enumerate(units):
        first_use.setdefault(tap, k)
        di = tap // 3
        for r in (2 * s + di, 2 * s + di + 1): first_pair.setdefault(r // 2, k)
        last_tile[(s, tt)] = k
        first_tile.setdefault((s, tt), k)
    sync = {}
    for tap in range(1, 9):
        sync.setdefault(max(W1K, first_use[tap] - WLEAD), []).append(("w", tap))
    for p in range(1, 7):
        sync.setdefault(first_pair[p] - PREF, []).append(("x", p))
    sync.setdefault(first_use[8] + 3, []).append(("rel", 0))
    sync.setdefault(max(last_tile[(0, 2)] + EPW, last_tile[(1, 2)] + 1), []).append(("st", 0))
    for s_ in range(1, 5):
        sync.setdefault(first_pair[s_ + 2] - PREF, []).append(("st", s_))
    for k in sorted(sync):
        if k not in sync: continue
        if all(a == "w" for a, _ in sync[k]):
            for d in (1, 2, 3):
                if k + d in sync and any(a == "x" for a, _ in sync[k + d]):
                    sync[k + d] += sync.pop(k); break
    synced_pairs = {0}
    st_done = set()
    sq = []

    stamp()
    e.wait_vm(lambda tg: tg == ("w", wlast(0)) or tg == ("x", 0))
    stamp()
    o("s_barrier")
    for f in tr_thunks(0): f()

    fill = []
    def add_fill(k, ths):
        for f in ths: fill.append((k, f))
    acc_w = {}

    def epi_thunks(s, tt):
        buf = s & 1; th = []
        a, b, c = (acc(buf, tt, mt) for mt in range(3))
        def cvt(d, s0, grp):
            def f():
                gap = e.n - acc_w[grp] - 1
                if gap < 9: o(f"s_nop {8 - gap}")
                o(f"v_cvt_pk_bf16_f32 v{d}, v{s0}, v{s0+1}")
            return f
        th += [cvt(a, a, a), cvt(a + 1, a + 2, a), cvt(a + 2, b, b), cvt(a + 3, b + 2, b), cvt(c, c, c), cvt(c + 1, c + 2, c)]
        off = buf * 20480 + tt * 3072
        th.insert(4, lambda: e.lds(f"ds_write_b128 v{V_SW[0]}, v[{a}:{a+3}] offset:{off}", ("sw", s)))
        th.append(lambda: e.lds(f"ds_write_b64 v{V_SW[1]}, v[{c}:{c+1}] offset:{off}", ("sw", s)))
        for f in th: f.epi = (s, tt)
        return th
    def store_thunks(s):
        th = []
        for i in range(5):
            r = VO + 4 * i
            th.append(lambda i=i, r=r: e.lds(f"ds_read_b128 v[{r}:{r+3}], v{V_SR[i%3]} offset:{(s&1)*20480 + 3072*(i//3)}", ("sr", s, i)))
        for i in range(5):
            r = VO + 4 * i
            def f(i=i, r=r):
                e.wait_lg(lambda tg: tg == ("sr", s, i))
                if i < 4:
                    e.vmem(f"buffer_store_dwordx4 v[{r}:{r+3}], v{V_OA}, s[12:15], s{S_OUT} offen offset:{1024*i} {STPOL}", "st")
                else:
                    e.vmem(f"buffer_store_dwordx4 v[{r}:{r+3}], v{V_OB}, s[12:15], s{S_OUT} offen {STPOL}", "st")
                    o(f"s_add_u32 s{S_OUT}, s{S_OUT}, {4*73728}")
            th.append(f)
        for f in th: f.st = s
        return th

    bbase = [0]
    def issue_read(k):
        s, tap, ks, tt = units[k]
        di, dj = divmod(tap, 3)
        if s >= bbase[0] + 2:
            bbase[0] += 2
            for d in range(3):
                o(f"v_add_u32 v{V_B[d]}, {4*ROWB}, v{V_B[d]}")
        assert bbase[0] <= s < bbase[0] + 2
        for r in (2 * s + di, 2 * s + di + 1): assert r // 2 in synced_pairs, (k, r)
        r = VB0 + 4 * (k % RING)
        off = (2 * (s - bbase[0]) + di) * ROWB + tt * 3072 + ks * 256
        e.lds(f"ds_read_b128 v[{r}:{r+3}], v{V_B[dj]} offset:{off}", ("b", k))

    issued = 0
    gap = 0; next_dma = 0
    pend1 = []
    for k in range(NU):
        s, tap, ks, tt = units[k]
        if PADS and k == PADK:
            o("s_waitcnt lgkmcnt(0)"); e.lg = []
            e.label("L_pads")
            o("s_memrealtime s[70:71]"); o("s_waitcnt lgkmcnt(0)")
            o("s_sub_u32 s70, s70, s96")
            o(f"s_cmp_lt_u32 s70, {PADS}")
            o("s_cbranch_scc1 L_pads")
        if k in sync:
            ev = sync[k]
            def pending(a, v):
                return (a == "w" and not any(tg == ("w", wlast(v)) for tg in issued_tags)) or \
                       (a == "x" and sum(1 for tg in issued_tags if tg == ("x", v)) < 5)
            while any(pending(a, v) for a, v in ev):
                need, f = dq.pop(0)
                assert need <= released, ("ring", k, need, released)
                f(); issued_tags.append(e.vm[-1])
            tags = [("w", wlast(v)) if a == "w" else ("x", v) for a, v in ev if a in "wx"]
            for a, v in ev:
                if a == "st":
                    while any(getattr(f, "epi", (-1,))[0] == v or getattr(f, "st", -1) == v - 1 for (_, f) in fill):
                        fill.pop(0)[1]()
                    while sq: sq.pop(0)[1]()
                    e.wait_lg(lambda tg: tg == ("sw", v))
            if tags: e.wait_vm(lambda tg: tg in tags)
            o("s_barrier")
            released |= tr_done
            for a, v in ev:
                if a == "w":
                    ths = tr_thunks(v)
                    for f in ths: f.tr = v
                    add_fill(k, ths)
                elif a == "x": synced_pairs.add(v)
                elif a == "st":
                    ths = store_thunks(v)
                    add_fill(k, ths[:5]); sq.extend((k + 2, f) for f in ths[5:]); st_done.add(v)
        while issued < min(NU, k + PREF + 1):
            issue_read(issued)
            issued += 1
        if first_use[tap] == k:
            while any(getattr(f, "tr", -1) == tap for (_, f) in fill):
                fill.pop(0)[1]()
            e.wait_lg(lambda tg: tg == ("tr", tap))
            tr_done.add(tap)
        if first_tile[(s, tt)] == k and s >= 2:
            fl = 0
            while any(getattr(f, "epi", None) == (s - 2, tt) for (_, f) in fill):
                fill.pop(0)[1](); fl = 1
            if fl: o("s_nop 1")
        if k % 81 == 0 or (k < 162 and k % 27 == 0): stamp()
        e.wait_lg(lambda tg: tg == ("b", k))
        r = VB0 + 4 * (k % RING)
        buf = s & 1
        for mt in range(3):
            a = acc(buf, tt, mt)
            wf, _ = wfrag(tap, ks, mt)
            cin = "0" if first_tile[(s, tt)] == k else f"v[{a}:{a+3}]"
            o(f"v_mfma_f32_16x16x32_bf16 v[{a}:{a+3}], {wf}, v[{r}:{r+3}], {cin}")
            acc_w[a] = e.n - 1
            gap += 1
            did = 0
            if sq and gap >= next_dma and sq[0][0] <= k and not any(getattr(f, "st", -1) >= 0 for _, f in fill):
                sq.pop(0)[1]()
                next_dma = gap + PACES
                did = 1
            elif dq and gap >= next_dma and dq[0][0] <= released:
                dq.pop(0)[1](); issued_tags.append(e.vm[-1])
                next_dma = gap + (PACE if k < 162 else PACE2)
                did = 1
            nf = 2 if len(fill) > 12 else 1
            for _ in range(nf - did):
                if fill and fill[0][0] <= k:
                    fill.pop(0)[1]()
        if last_tile[(s, tt)] == k and k < NU - 1:
            if s == 1: pend1.append(epi_thunks(s, tt))
            else: add_fill(k + 3, epi_thunks(s, tt))
        if pend1 and 0 in st_done:
            for th in pend1: add_fill(k + 1, th)
            pend1.clear()
    assert not dq
    while fill: fill.pop(0)[1]()
    while sq: sq.pop(0)[1]()
    for f in epi_thunks(5, 2): f()
    o("s_waitcnt lgkmcnt(0)"); e.lg = []
    o("s_barrier")
    for f in store_thunks(5): f()
    if PADT:
        o("s_waitcnt vmcnt(0)")
        e.label("L_pad")
        o("s_memrealtime s[70:71]"); o("s_waitcnt lgkmcnt(0)")
        o("s_sub_u32 s70, s70, s96")
        o(f"s_cmp_lt_u32 s70, {PADT}")
        o("s_cbranch_scc1 L_pad")
    if DIAG == 5:
        o("s_waitcnt vmcnt(0)")
        stamp(True)
        o("s_memrealtime s[70:71]"); o("s_waitcnt lgkmcnt(0)")
        o("s_and_b32 s60, s2, 63")
        o(f"s_or_b32 s60, s60, s{S_W}")
        o("s_cmp_lg_u32 s60, 0")
        o("s_cbranch_scc1 L_end")
        o("s_sub_u32 s64, s66, s64")
        o("s_sub_u32 s65, s70, s96")
        o("s_and_b32 s57, s57, 0xffff")
        o("s_mov_b32 s58, 256")
        o("s_mov_b32 s59, 0x00020000")
        o("s_lshr_b32 s60, s2, 6")
        o("s_lshl_b32 s60, s60, 4")
        o("v_mov_b32 v190, 0")
        for i, r in enumerate((64, 65, 96, 70)):
            o(f"v_mov_b32 v191, s{r}")
            o(f"buffer_store_dword v191, v190, s[56:59], s60 offen offset:{4*i}")
    elif DIAG:
        stamp(True)
        o("s_waitcnt vmcnt(0)")
        stamp(True)
        if DIAG == 2:
            o("s_memrealtime s[70:71]"); o("s_waitcnt lgkmcnt(0)")
            o("s_sub_u32 s70, s70, s96"); o("s_add_u32 s70, s70, s64")
            nst[0] += 1
        o("s_and_b32 s57, s57, 0xffff")
        o("s_mov_b32 s58, 0x100000")
        o("s_mov_b32 s59, 0x00020000")
        o(f"s_lshl_b32 s60, s2, 2")
        o(f"s_add_u32 s60, s60, s{S_W}")
        o("s_lshl_b32 s60, s60, 6")
        o("v_mov_b32 v190, 0")
        for i in range(nst[0]):
            o(f"v_mov_b32 v191, s{64+2*i}")
            o(f"buffer_store_dword v191, v190, s[56:59], s60 offen offset:{4*i}")
        print("nstamps", nst[0])
    e.label("L_end")
    o("s_endpgm")
    return e.lines

issued_tags = []

HEADER = f"""; Kernarg layout for this problem (40 bytes, ptrs only, base s[0:1]):
; @launch grid=(256,1,1) block=(256,1,1) lds={LDS_BYTES}
.amdgcn_target "amdgcn-amd-amdhsa--gfx950"
.text
.globl {NAME}_kernel
.p2align 8
.type {NAME}_kernel,@function
{NAME}_kernel:
"""
FOOTER = f"""
.section .rodata,"a"
.p2align 6
.amdhsa_kernel {NAME}_kernel
  .amdhsa_next_free_vgpr 512
  .amdhsa_next_free_sgpr 100
  .amdhsa_accum_offset 256
  .amdhsa_group_segment_fixed_size 0
  .amdhsa_kernarg_size 40
  .amdhsa_user_sgpr_count 2
  .amdhsa_user_sgpr_kernarg_segment_ptr 1
  .amdhsa_system_sgpr_workgroup_id_x 1
.end_amdhsa_kernel
"""
if __name__ == "__main__":
    out = sys.argv[1] if len(sys.argv) > 1 else f"cdna_kernels/{NAME}.s"
    for u in range(768): assert (u * 1366) >> 16 == u // 48
    for q in range(320): assert (q * 5462) >> 16 == q // 12
    with open(out, "w") as f:
        f.write(HEADER + "\n".join(gen()) + FOOTER)
    print("wrote", out)
```
